```python
import torch

def _softmax(x, axis=-1):
    return torch.softmax(x, dim=axis)

def _gelu(x):
    return torch.nn.functional.gelu(x, approximate='tanh')

def _silu(x):
    return torch.nn.functional.silu(x)

def _sigmoid(x):
    return torch.sigmoid(x)

def _layernorm(x, axis=-1, eps=1e-05):
    m = x.mean(dim=axis, keepdim=True)
    v = x.var(dim=axis, keepdim=True, unbiased=False)
    return (x - m) / torch.sqrt(v + eps)

def _scatter_add(tgt, idx, src, axis=0):
    return tgt.clone().index_add_(axis, idx, src)

def _segment_sum(src, seg, n):
    out = torch.zeros((n,) + src.shape[1:], dtype=src.dtype)
    return out.index_add_(0, seg, src)

def _pad(x, pw):
    flat = tuple((v for pair in reversed(pw) for v in pair))
    return torch.nn.functional.pad(x, flat)
kernel_name = 'gated_mix__memory_aug_recurrent_mem_tr__dense_activation_silu__prompt'

def setup_inputs():

    _w = lambda a: (lambda t: t.to(torch.bfloat16) if t.is_floating_point() else t)(torch.as_tensor(a))

    def _A_setup():
        B, S, Dm = (1, 2048, 512)
        H, Dh = (32, 128)
        M, seg = (8, 32)
        seg = min(seg, S)
        S = S // seg * seg
        return {'x': _w((lambda *s: torch.randn(*s, dtype=torch.bfloat16) * 0.05)(B, S, Dm)), 'mem0': _w((lambda *s: torch.randn(*s, dtype=torch.bfloat16) * 0.4)(B, M, Dm)), 'Wq': _w((lambda *s: torch.randn(*s, dtype=torch.bfloat16) * 6.4)(Dm, H, Dh) * Dm ** (-0.5)), 'Wk': _w((lambda *s: torch.randn(*s, dtype=torch.bfloat16) * 6.4)(Dm, H, Dh) * Dm ** (-0.5)), 'Wv': _w((lambda *s: torch.randn(*s, dtype=torch.bfloat16) * 0.4)(Dm, H, Dh) * Dm ** (-0.5)), 'Wo': _w((lambda *s: torch.randn(*s, dtype=torch.bfloat16) * 0.4)(H, Dh, Dm) * (H * Dh) ** (-0.5)), 'seg_len': seg}
    _A_in = _A_setup()

    def _B_setup():
        B, S, D, F = (1, 2048, 512, 1792)
        return {'x': _w((lambda *s: torch.randn(*s, dtype=torch.bfloat16) * 0.05)(B, S, D)), 'w1': _w((lambda *s: torch.randn(*s, dtype=torch.bfloat16) * 3.2)(D, F) * D ** (-0.5)), 'w2': _w((lambda *s: torch.randn(*s, dtype=torch.bfloat16) * 0.2)(F, D) * F ** (-0.5))}
    _B_in = _B_setup()
    return {'A_x': _A_in['x'], 'A_mem0': _A_in['mem0'], 'A_Wq': _A_in['Wq'], 'A_Wk': _A_in['Wk'], 'A_Wv': _A_in['Wv'], 'A_Wo': _A_in['Wo'], 'A_seg_len': _A_in['seg_len'], 'B_x': _B_in['x'], 'B_w1': _B_in['w1'], 'B_w2': _B_in['w2'], 'gate_w': _w((lambda *s: torch.randn(*s, dtype=torch.bfloat16) * 0.05)(512) * 16.0)}

def reference(A_x, A_mem0, A_Wq, A_Wk, A_Wv, A_Wo, A_seg_len, B_x, B_w1, B_w2, gate_w):

    def _A_ref(x, mem0, Wq, Wk, Wv, Wo, seg_len):
        B, S, Dm = x.shape
        H, Dh = (Wq.shape[1], Wq.shape[2])
        M = mem0.shape[1]
        scale = Dh ** (-0.5)
        n_seg = S // seg_len
        L = M + seg_len
        idx = torch.arange(L)
        mask = (idx[:, None] < M) | (idx[:, None] >= idx[None, :])
        mem = mem0
        outs = []
        for s in range(n_seg):
            xs = x[:, s * seg_len:(s + 1) * seg_len, :].clone()
            h = torch.concatenate([mem, xs], axis=1)
            q = torch.einsum('btd,dhe->bhte', h, Wq)
            k = torch.einsum('btd,dhe->bhte', h, Wk)
            v = torch.einsum('btd,dhe->bhte', h, Wv)
            scores = torch.einsum('bhqe,bhke->bhqk', q, k) * scale
            scores = torch.where(mask[None, None], scores, -1000000000.0)
            p = _softmax(scores, axis=-1)
            o = torch.einsum('bhqk,bhke->bhqe', p, v)
            o = torch.einsum('bhte,hed->btd', o, Wo)
            mem = o[:, :M, :].clone()
            outs.append(o[:, M:, :])
        return torch.concatenate(outs, axis=1)

    def _B_ref(x, w1, w2):
        h = torch.einsum('bsd,df->bsf', x, w1)
        h = _silu(h)
        out = torch.einsum('bsf,fd->bsd', h, w2)
        return out
    x = A_x
    g = _sigmoid((x * gate_w).sum(-1, keepdims=True))
    a = _A_ref(x, A_mem0, A_Wq, A_Wk, A_Wv, A_Wo, A_seg_len)
    b = _B_ref(x, B_w1, B_w2)
    return g * a + (1 - g) * b
```

```python
import re

_REG = re.compile(r"\b([vas])(?:(\d+)|\[(\d+):(\d+)\])|\b(vcc|exec|m0|scc)\b")
TRANS = ("v_exp_f32", "v_rcp_f32", "v_log_f32", "v_rsq_f32", "v_sqrt_f32", "v_sin_f32", "v_cos_f32")


def regs_of(tok):
    out = []
    for m in _REG.finditer(tok):
        if m.group(5):
            out.append(m.group(5))
        elif m.group(2) is not None:
            out.append(m.group(1) + m.group(2))
        else:
            out += [m.group(1) + str(i) for i in range(int(m.group(3)), int(m.group(4)) + 1)]
    return out


def split_ops(s):
    ops, depth, cur = [], 0, ""
    for ch in s:
        if ch == "[":
            depth += 1
        if ch == "]":
            depth -= 1
        if ch == "," and depth == 0:
            ops.append(cur.strip())
            cur = ""
        else:
            cur += ch
    if cur.strip():
        ops.append(cur.strip())
    return ops


class Ins:
    def __init__(self, text):
        self.text = text
        t = text.split(";")[0].strip()
        parts = t.split(None, 1)
        self.op = parts[0]
        rest = parts[1] if len(parts) > 1 else ""
        self.ops = split_ops(rest)
        op = self.op
        self.kind = "other"
        self.dst, self.src = [], []
        self.passes = 0
        self.srcC = []
        self.dpp = False
        o = self.ops
        if op.startswith("v_mfma") or op.startswith("v_smfmac"):
            self.kind = "mfma"
            self.passes = 8 if "32x32" in op else 4
            self.dst = regs_of(o[0])
            self.srcAB = regs_of(o[1]) + regs_of(o[2])
            if op.startswith("v_smfmac"):
                self.srcC = regs_of(o[0])
                self.srcAB += regs_of(o[3].split()[0])
            else:
                self.srcC = regs_of(o[3].split()[0])
            self.src = self.srcAB + self.srcC
        elif op.startswith("v_"):
            self.kind = "valu"
            self.dpp = "_dpp" in op or "quad_perm" in t or "row_" in t
            if op.startswith("v_permlane"):
                self.dst = regs_of(o[0]) + regs_of(o[1])
                self.src = list(self.dst)
                self.kind = "permlane"
            else:
                self.dst = regs_of(o[0])
                for x in o[1:]:
                    self.src += regs_of(x.split(" quad_perm")[0].split(" row_")[0])
                if op.startswith("v_fmac") or op.startswith("v_dot2c"):
                    self.src += self.dst
                if op.startswith("v_cndmask") and len(o) == 3:
                    self.src.append("vcc")
        elif op.startswith("buffer_") or op.startswith("global_"):
            self.kind = "vmem"
            is_lds = bool(re.search(r"\blds\b", t))
            allregs = [regs_of(x) for x in o]
            if "load" in op and not is_lds:
                self.dst = allregs[0]
                for x in allregs[1:]:
                    self.src += x
            else:
                for x in allregs:
                    self.src += x
                if is_lds:
                    self.src.append("m0")
                    self.kind = "vmem_lds"
            self.wide_store = ("store" in op) and ("x4" in op or "x3" in op)
            if self.wide_store:
                self.store_data = allregs[0] if op.startswith("buffer_") else allregs[1]
        elif op.startswith("ds_"):
            self.kind = "ds"
            allregs = [regs_of(x.split(" offset")[0]) for x in o]
            if "read" in op or "permute" in op or "swizzle" in op:
                self.dst = allregs[0]
                for x in allregs[1:]:
                    self.src += x
            else:
                for x in allregs:
                    self.src += x
        elif op.startswith("s_"):
            self.kind = "salu"
            if op in ("s_nop", "s_waitcnt", "s_barrier", "s_endpgm", "s_sleep", "s_setprio") or op.startswith("s_cbranch") or op == "s_branch":
                pass
            elif op.startswith("s_cmp") or op.startswith("s_bitcmp"):
                for x in o:
                    self.src += regs_of(x)
            else:
                self.dst = regs_of(o[0]) if o else []
                for x in o[1:]:
                    self.src += regs_of(x)

    def slots(self):
        if self.op == "s_nop":
            return int(self.ops[0], 0) + 1
        return 1


class Asm:
    def __init__(self):
        self.lines = []

    def e(self, text):
        for ln in text.strip("\n").split("\n"):
            ln = ln.strip()
            if ln:
                self.lines.append(ln)

    def label(self, name):
        self.lines.append(name + ":")

    def c(self, text):
        self.lines.append("; " + text)

    def raw(self, text):
        self.lines.append("@RAW " + text)

    def render(self):
        return fix_hazards(self.lines)


def fix_hazards(lines):
    out = []
    ws = 0
    valu_w = {}
    trans_w = {}
    vsg_w = {}
    mfma_w = {}
    mfma_c = {}
    st_data = {}
    m0_w = [-100]
    RD = {2: 5, 4: 8, 8: 12, 16: 20}
    OV = {2: 4, 4: 6, 8: 10, 16: 18}
    WAR = {2: 1, 4: 3, 8: 7, 16: 15}

    def need(ins):
        n = 0

        def req(slot, k):
            nonlocal n
            n = max(n, k - (ws - slot - 1))

        k = ins.kind
        if k == "mfma":
            for r in ins.src:
                if r in valu_w:
                    req(valu_w[r], 2)
            for r in ins.srcAB:
                if r in mfma_w:
                    req(mfma_w[r][0], RD[mfma_w[r][1]])
            for r in ins.srcC:
                if r in mfma_w:
                    s, p, d = mfma_w[r]
                    if d == ins.srcC and p == ins.passes:
                        req(s, 0 if p >= 4 else 2)
                    else:
                        req(s, OV[p])
            for r in ins.dst:
                if r in mfma_w and r not in ins.srcC:
                    req(mfma_w[r][0], OV[mfma_w[r][1]])
        elif k in ("valu", "permlane"):
            for r in ins.src + ins.dst:
                if r in mfma_w:
                    req(mfma_w[r][0], RD[mfma_w[r][1]])
            for r in ins.dst:
                if r in mfma_c:
                    req(mfma_c[r][0], WAR[mfma_c[r][1]])
                if r in st_data:
                    req(st_data[r], 2)
            for r in ins.src:
                if r in trans_w and ins.op not in TRANS:
                    req(trans_w[r], 1)
                if r in vsg_w:
                    req(vsg_w[r], 4 if ins.op.startswith(("v_readlane", "v_writelane")) else 2)
                if r in valu_w:
                    if k == "permlane" or ins.dpp:
                        req(valu_w[r], 2)
                    if ins.op.startswith(("v_readfirstlane", "v_readlane")):
                        req(valu_w[r], 1)
        elif k in ("vmem", "vmem_lds", "ds"):
            for r in ins.src + ins.dst:
                if r in mfma_w:
                    req(mfma_w[r][0], RD[mfma_w[r][1]])
            for r in ins.src:
                if r in vsg_w and k != "ds":
                    req(vsg_w[r], 5)
            for r in ins.dst:
                if r in st_data:
                    req(st_data[r], 1)
            if k == "vmem_lds":
                req(m0_w[0], 1)
        return n

    def drain():
        n = 0
        for s in valu_w.values():
            n = max(n, 2 - (ws - s - 1))
        for s in vsg_w.values():
            n = max(n, 5 - (ws - s - 1))
        for s, p, _ in mfma_w.values():
            n = max(n, RD[p] - (ws - s - 1))
        for s in st_data.values():
            n = max(n, 2 - (ws - s - 1))
        n = max(n, 1 - (ws - m0_w[0] - 1))
        return n

    def nops(n):
        nonlocal ws
        while n > 0:
            k = min(n, 16)
            out.append(f"  s_nop {k - 1}")
            ws += k
            n -= k

    for ln in lines:
        if ln.startswith("@RAW "):
            out.append(ln[5:])
            continue
        if ln.startswith(";"):
            out.append("  " + ln)
            continue
        if ln.endswith(":") and " " not in ln:
            nops(drain())
            out.append(ln)
            continue
        ins = Ins(ln)
        if ins.op.startswith("s_cbranch") or ins.op == "s_branch":
            nops(drain() - 1)
        else:
            nops(need(ins))
        out.append("  " + ln)
        slot = ws
        ws += ins.slots()
        k = ins.kind
        for r in ins.dst:
            valu_w.pop(r, None)
            trans_w.pop(r, None)
            vsg_w.pop(r, None)
            mfma_w.pop(r, None)
        if k == "mfma":
            for r in ins.dst:
                mfma_w[r] = (slot, ins.passes, ins.dst)
            for r in ins.srcC:
                mfma_c[r] = (slot, ins.passes)
        elif k in ("valu", "permlane"):
            for r in ins.dst:
                if r[0] in "va" and r != "vcc":
                    valu_w[r] = slot
                    if ins.op in TRANS:
                        trans_w[r] = slot
                else:
                    vsg_w[r] = slot
        elif k == "vmem" and getattr(ins, "wide_store", False):
            for r in ins.store_data:
                st_data[r] = slot
        elif k == "salu" and "m0" in ins.dst:
            m0_w[0] = slot
        if len(valu_w) > 64:
            for d in (valu_w, trans_w, vsg_w, st_data):
                for r in [r for r, s in d.items() if ws - s > 24]:
                    del d[r]
            for d in (mfma_w, mfma_c):
                for r in [r for r, s in d.items() if ws - s[0] > 24]:
                    del d[r]
    return "\n".join(out) + "\n"


def vr(base, n=1, p="v"):
    return f"{p}{base}" if n == 1 else f"{p}[{base}:{base + n - 1}]"
```

```python
from asmdsl import vr


def role_chain(a, tag):
    import gen as G
    from gen import S, srd, f32, wfrag, WQ, WK, WV, SRD_WS, SRD_A, SRD_B, SRD_C, SRD_D, SRD_E, SRD_X
    from gen import S_W, S_H, S_Y, S_T0, S_T1, S_T2, S_T3, WS_KV, WS_KM, WS_P, WS_M

    VWO, VHI, VIDX, VMLD, VXW, VTR, VV8, VPST, VL16, VL8, VMST = range(1, 12)
    T0, T1, T2, T3 = 12, 13, 14, 15
    ONES = 16
    MA, ACQ, ACK, QT, B1, B2, SX, LX = 20, 52, 60, 68, 84, 100, 116, 124
    ACV, SM, VM, PM, OA = ACQ, ACK, QT, QT + 8, ACQ
    L_KV, L_MEM, L_QT, L_KT, L_VP = 0, 16384, 24576, 26624, 28672
    SS, SMOFF, STAG, SKV, SPST, SPLD, SMST, SKM, SBUD = 45, 46, 47, 48, 50, 54, 55, 56, 57
    MLO, MHI, MPM, MEX, SC = 58, 60, 62, 92, 94
    END = tag.split("_R")[0] + "_END"

    a.e(f"s_mov_b32 s{S_H}, s{S_Y}")
    srd(a, SRD_A, G.P_WQ, 0x400000)
    srd(a, SRD_B, G.P_WK, 0x400000)
    srd(a, SRD_C, G.P_WV, 0x400000)
    srd(a, SRD_D, G.P_WO, 0x400000)
    srd(a, SRD_E, G.P_DBG, 256)
    srd(a, SRD_X, G.P_MEM0, 8192)
    a.e(f"v_lshlrev_b32 v{VL16}, 4, v0")
    a.e(f"v_lshlrev_b32 v{VL8}, 3, v0")
    a.e(f"s_lshl_b32 s{S_T0}, s{S_H}, 2")
    a.e(f"s_add_u32 s{S_T0}, s{S_T0}, s{S_W}")
    a.e(f"s_lshl_b32 s{S_T0}, s{S_T0}, 12")
    a.e(f"s_add_u32 s{SPLD}, s{S_T0}, {WS_P}")
    a.e(f"s_add_u32 s{S_T1}, s{S_T0}, {WS_M}")
    for i in range(4):
        a.e(f"v_mov_b32 v{20 + i}, 0")
        a.e(f"v_mov_b32 v{24 + i}, -1")
    for i in range(4):
        a.e(f"buffer_store_dwordx4 v[20:23], v{VL16}, {S(SRD_WS)}, s{SPLD} offen offset:{i * 1024} sc1")
        a.e(f"buffer_store_dwordx4 v[24:27], v{VL16}, {S(SRD_WS)}, s{S_T1} offen offset:{i * 1024} sc1")
    a.e(f"s_getreg_b32 s{S_T2}, hwreg(HW_REG_XCC_ID)")
    a.e(f"s_and_b32 s{S_T2}, s{S_T2}, 15")
    a.e(f"s_add_u32 s{S_T2}, s{S_T2}, 1")
    a.e(f"v_mov_b32 v20, s{S_T2}")
    a.e(f"s_lshl_b32 s{S_T3}, s{S_H}, 2")
    a.e("s_waitcnt vmcnt(0)")
    a.e("s_barrier")
    a.e(f"s_cmp_lg_u32 s{S_W}, 0")
    a.e(f"s_cbranch_scc1 {tag}_NOANN")
    a.e("v_mov_b32 v21, 0")
    a.e("s_mov_b64 exec, 1")
    a.e(f"buffer_store_dword v20, v21, {S(SRD_E)}, s{S_T3} offen sc1")
    a.e("s_mov_b64 exec, -1")
    a.e("s_waitcnt vmcnt(0)")
    a.label(f"{tag}_NOANN")
    a.e(f"s_lshl_b32 s49, s{S_H}, 8")
    G.loader_a(a, [(SRD_A, 49, 8192, WQ), (SRD_B, 49, 8192, WK), (SRD_C, 49, 8192, WV)], with_wo=True)
    a.e(f"s_lshr_b32 s{S_T0}, s{S_W}, 1")
    a.e(f"s_lshl_b32 s{S_T0}, s{S_T0}, 16")
    a.e(f"v_add_u32 v{VWO}, s{S_T0}, v{VL16}")
    a.e(f"v_add_u32 v{VHI}, 0x20000, v{VL16}")
    a.e(f"v_add_u32 v{VV8}, 0x20000, v{VL8}")
    a.e(f"v_bfe_u32 v{T0}, v0, 3, 1")
    a.e(f"v_mov_b32 v{VIDX}, 0x4444")
    a.e(f"v_mov_b32 v{T1}, 0xeeee")
    a.e(f"v_cmp_eq_u32 vcc, 1, v{T0}")
    a.e(f"v_cndmask_b32 v{VIDX}, v{VIDX}, v{T1}, vcc")
    a.e(f"v_lshrrev_b32 v{T1}, 4, v0")
    a.e(f"v_lshl_add_u32 v{T2}, v{T1}, 1, v{T0}")
    a.e(f"v_lshlrev_b32 v{T2}, 4, v{T2}")
    a.e(f"v_and_b32 v{T3}, 7, v0")
    a.e(f"v_lshl_add_u32 v{VMLD}, v{T3}, 10, v{T2}")
    a.e(f"v_lshrrev_b32 v{T0}, 5, v0")
    a.e(f"v_and_b32 v{T2}, 15, v0")
    a.e(f"v_lshl_add_u32 v{T3}, v{T0}, 4, v{T2}")
    a.e(f"v_and_b32 v{T1}, 1, v{T1}")
    a.e(f"v_lshlrev_b32 v{VXW}, 4, v{T3}")
    a.e(f"v_lshl_add_u32 v{VXW}, v{T1}, 3, v{VXW}")
    a.e(f"v_add_u32 v{VXW}, 0x20000, v{VXW}")
    a.e(f"v_lshrrev_b32 v{T3}, 2, v{T2}")
    a.e(f"v_lshl_add_u32 v{T3}, v{T0}, 2, v{T3}")
    a.e(f"v_lshlrev_b32 v{VPST}, 12, v{T3}")
    a.e(f"v_and_b32 v{T3}, 3, v0")
    a.e(f"v_lshl_add_u32 v{T3}, v{T1}, 2, v{T3}")
    a.e(f"v_lshl_add_u32 v{VPST}, v{T3}, 4, v{VPST}")
    a.e(f"v_lshrrev_b32 v{T1}, 4, v0")
    a.e(f"v_bfe_u32 v{T2}, v0, 2, 2")
    a.e(f"v_lshl_add_u32 v{T2}, v{T1}, 2, v{T2}")
    a.e(f"v_and_b32 v{T3}, 1, v0")
    a.e(f"v_lshlrev_b32 v{VTR}, 4, v{T2}")
    a.e(f"v_lshl_add_u32 v{VTR}, v{T3}, 3, v{VTR}")
    a.e(f"v_add_u32 v{VTR}, 0x20000, v{VTR}")
    a.e(f"v_and_b32 v{T2}, 1, v{T1}")
    a.e(f"v_lshlrev_b32 v{T2}, 1, v{T2}")
    a.e(f"v_lshrrev_b32 v{T3}, 1, v{T1}")
    a.e(f"v_or_b32 v{T2}, v{T2}, v{T3}")
    a.e(f"v_bfe_u32 v{T3}, v0, 2, 1")
    a.e(f"v_lshl_add_u32 v{T2}, v{T3}, 2, v{T2}")
    a.e(f"v_bfe_u32 v{T3}, v0, 1, 1")
    a.e(f"v_lshlrev_b32 v{VMST}, 10, v{T2}")
    a.e(f"v_lshl_add_u32 v{VMST}, v{T3}, 4, v{VMST}")
    for i in range(4):
        a.e(f"v_mov_b32 v{ONES + i}, 0x3f803f80")
    a.e(f"s_lshl_b32 s{S_T0}, s{S_W}, 17")
    a.e(f"s_lshl_b32 s{S_T1}, s{S_H}, 7")
    a.e(f"s_add_u32 s{S_T0}, s{S_T0}, s{S_T1}")
    for tp in range(4):
        a.e(f"s_add_u32 s{SPST + tp}, s{S_T0}, {WS_P + tp * 32768}")
    a.e(f"s_lshl_b32 s{S_T0}, s{S_H}, 5")
    a.e(f"s_lshl_b32 s{S_T1}, s{S_W}, 2")
    a.e(f"s_add_u32 s{SMST}, s{S_T0}, s{S_T1}")
    a.e(f"s_mov_b32 s{MLO}, 0x00ff00ff")
    a.e(f"s_mov_b32 s{MLO + 1}, 0x00ff00ff")
    a.e(f"s_mov_b32 s{MHI}, 0xff00ff00")
    a.e(f"s_mov_b32 s{MHI + 1}, 0xff00ff00")
    a.e(f"s_mov_b32 s{MPM}, 0x00ff00ff")
    a.e(f"s_mov_b32 s{MPM + 1}, 0xff00ff00")
    a.e(f"s_mov_b32 s{MEX}, 0x00550055")
    a.e(f"s_mov_b32 s{MEX + 1}, 0x00550055")
    a.e(f"s_mov_b32 s{SC}, {f32(G.SCALE * G.LOG2E)}")
    a.e(f"s_mov_b32 s{SBUD}, 0x400000")
    a.e(f"s_mov_b32 s{SS}, 0")
    a.e(f"s_mov_b32 s{SMOFF}, {WS_M}")
    a.e(f"s_mov_b32 s{STAG}, 1")
    a.e(f"s_lshl_b32 s{SKV}, s{S_H}, 14")
    a.e(f"s_lshl_b32 s{S_T0}, s{S_W}, 12")
    a.e(f"s_add_u32 s{SKV}, s{SKV}, s{S_T0}")
    a.e(f"s_lshl_b32 s{SKM}, s{S_H}, 13")
    a.e(f"s_add_u32 s{SKM}, s{SKM}, {WS_KM}")
    a.e(f"v_and_b32 v{T0}, 31, v0")
    a.e(f"v_lshlrev_b32 v{T0}, 2, v{T0}")
    a.label(f"{tag}_HS")
    a.e(f"buffer_load_dword v{T1}, v{T0}, {S(SRD_E)}, 0 offen sc1")
    a.e(f"s_sub_u32 s{SBUD}, s{SBUD}, 1")
    a.e(f"s_cbranch_scc1 {END}")
    a.e("s_waitcnt vmcnt(0)")
    a.e(f"v_cmp_eq_u32 vcc, 0, v{T1}")
    a.e(f"s_cbranch_vccnz {tag}_HS")
    a.e(f"v_lshrrev_b32 v{T2}, 1, v0")
    a.e(f"v_lshlrev_b32 v{T2}, 10, v{T2}")
    a.e(f"v_and_b32 v{T3}, 1, v0")
    a.e(f"v_lshl_add_u32 v20, v{T3}, 2, v{T2}")
    a.e(f"v_lshl_add_u32 v21, v{T3}, 4, v{T2}")
    a.e(f"s_lshl_b32 s{S_T0}, s{SMST}, 0")
    a.e(f"s_lshl_b32 s{S_T1}, s{S_H}, 5")
    a.e(f"s_lshl_b32 s{S_T2}, s{S_W}, 3")
    a.e(f"s_add_u32 s{S_T1}, s{S_T1}, s{S_T2}")
    a.e(f"s_add_u32 s{S_T0}, s{S_T0}, {WS_M}")
    a.e("s_mov_b64 exec, 0xffff")
    a.e(f"buffer_load_dword v22, v20, {S(SRD_X)}, s{S_T1} offen")
    a.e("s_waitcnt vmcnt(0)")
    a.e("v_min_u32 v22, -2, v22")
    a.e(f"buffer_store_dword v22, v21, {S(SRD_WS)}, s{S_T0} offen sc1")
    a.e("s_mov_b64 exec, -1")
    a.e(f"v_readfirstlane_b32 s{S_T0}, v{T1}")
    a.e(f"v_cmp_ne_u32 vcc, s{S_T0}, v{T1}")
    a.e(f"s_cbranch_vccnz {tag}_SLOW")
    for slow in (0, 1):
        if slow:
            a.label(f"{tag}_SLOW")
        for w in range(1, 4):
            a.e(f"s_cmp_eq_u32 s{S_W}, {w}")
            a.e(f"s_cbranch_scc1 {tag}_W{w}M{slow}")
        for w in range(4):
            lt = f"{tag}_W{w}M{slow}"
            st = " sc1" if slow else ""
            a.label(lt)

            def smf(acc, af, bf):
                a.e(f"v_smfmac_f32_16x16x64_bf16 {vr(acc, 4)}, {vr(af, 4)}, {bf}, v{VIDX}")

            def swap_add_pack(acc, dst):
                for r in range(4):
                    a.e(f"v_permlane32_swap_b32 v{acc + r}, v{acc + 4 + r}")
                for r in range(4):
                    a.e(f"v_add_f32 v{acc + r}, v{acc + r}, v{acc + 4 + r}")
                if dst is not None:
                    a.e(f"v_cvt_pk_bf16_f32 v{dst}, v{acc}, v{acc + 1}")
                    a.e(f"v_cvt_pk_bf16_f32 v{dst + 1}, v{acc + 2}, v{acc + 3}")

            own = [2 * w, 2 * w + 1]
            others = [(2 * w + i) % 8 for i in range(2, 8)]
            for i in range(16):
                a.e(f"v_mov_b32 v{ACQ + i}, 0")
            a.label(f"{lt}_P2")
            for kb in own:
                a.e(f"buffer_load_dwordx4 {vr(MA + 4 * kb, 4)}, v{VMLD}, {S(SRD_WS)}, s{SMOFF} offen offset:{kb * 128} sc1")
            a.e(f"s_sub_u32 s{SBUD}, s{SBUD}, 1")
            a.e(f"s_cbranch_scc1 {END}")
            a.e("s_waitcnt vmcnt(0)")
            m = MA + 8 * w
            a.e(f"v_max3_u32 v{T0}, v{m}, v{m + 1}, v{m + 2}")
            a.e(f"v_max3_u32 v{T1}, v{m + 3}, v{m + 4}, v{m + 5}")
            a.e(f"v_max3_u32 v{T0}, v{T0}, v{m + 6}, v{m + 7}")
            a.e(f"v_max_u32 v{T0}, v{T0}, v{T1}")
            a.e(f"v_cmp_eq_u32 vcc, -1, v{T0}")
            a.e(f"s_cbranch_vccnz {lt}_P2")
            for kb in own:
                a.e(f"ds_write_b128 v{VHI}, {vr(MA + 4 * kb, 4)} offset:{L_MEM + kb * 1024}")
            for kb in own:
                for t in range(2):
                    smf(ACQ + 4 * t, MA + 4 * kb, wfrag(WQ, kb, t))
            for kb in own:
                for t in range(2):
                    smf(ACK + 4 * t, MA + 4 * kb, wfrag(WK, kb, t))
            a.e("s_waitcnt lgkmcnt(0)")
            a.e("s_barrier")
            for kb in others:
                a.e(f"ds_read_b128 {vr(MA + 4 * kb, 4)}, v{VHI} offset:{L_MEM + kb * 1024}")
            for i in range(4):
                a.e(f"s_mov_b32 m0, {0x20000 + L_KV + w * 4096 + i * 1024}")
                a.e(f"s_add_u32 s{S_T0}, s{SKV}, {WS_KV + i * 1024}")
                a.e(f"buffer_load_dwordx4 v{VL16}, {S(SRD_WS)}, s{S_T0} offen lds")
            a.e(f"s_add_u32 s{S_T0}, s{SMOFF}, 8192")
            a.e(f"buffer_load_dwordx4 {vr(B2, 4)}, v{VMLD}, {S(SRD_WS)}, s{S_T0} offen offset:{own[0] * 128} sc1")
            a.e(f"buffer_load_dwordx4 {vr(B2 + 4, 4)}, v{VMLD}, {S(SRD_WS)}, s{S_T0} offen offset:{own[1] * 128} sc1")
            for n, kb in enumerate(others):
                a.e(f"s_waitcnt lgkmcnt({5 - n})")
                for t in range(2):
                    smf(ACQ + 4 * t, MA + 4 * kb, wfrag(WQ, kb, t))
            for kb in others[:2]:
                for t in range(2):
                    smf(ACK + 4 * t, MA + 4 * kb, wfrag(WK, kb, t))
            swap_add_pack(ACQ, T0)
            a.e(f"ds_write_b64 v{VXW}, {vr(T0, 2)} offset:{L_QT + w * 512}")
            for kb in others[2:]:
                for t in range(2):
                    smf(ACK + 4 * t, MA + 4 * kb, wfrag(WK, kb, t))
            a.e("s_waitcnt vmcnt(0) lgkmcnt(0)")
            a.e("s_barrier")
            for es in range(4):
                for hf in range(2):
                    a.e(f"ds_read_b64_tr_b16 {vr(QT + 4 * es + 2 * hf, 2)}, v{VTR} offset:{L_QT + es * 512 + hf * 256}")
            for es in range(4):
                a.e(f"ds_read_b128 {vr(B1 + 4 * es, 4)}, v{VHI} offset:{L_KV + es * 1024}")
            for i in range(8):
                a.e(f"v_mov_b32 v{ACV + i}, 0")
            swap_add_pack(ACK, T0)
            a.e(f"ds_write_b64 v{VXW}, {vr(T0, 2)} offset:{L_KT + w * 512}")
            a.e("s_waitcnt lgkmcnt(1)")
            for es in range(4):
                a.e(f"ds_read_b128 {vr(B2 + 4 * es, 4)}, v{VHI} offset:{L_KV + 4096 + es * 1024}")
            for es in range(4):
                a.e(f"v_mfma_f32_16x16x32_bf16 {vr(SX, 4)}, {vr(B1 + 4 * es, 4)}, {vr(QT + 4 * es, 4)}, {'0' if es == 0 else vr(SX, 4)}")
            a.e("s_waitcnt lgkmcnt(0)")
            a.e("s_barrier")
            for es in range(4):
                a.e(f"v_mfma_f32_16x16x32_bf16 {vr(SX + 4, 4)}, {vr(B2 + 4 * es, 4)}, {vr(QT + 4 * es, 4)}, {'0' if es == 0 else vr(SX + 4, 4)}")
            for es in range(4):
                for hf in range(2):
                    a.e(f"ds_read_b64_tr_b16 {vr(B1 + 4 * es + 2 * hf, 2)}, v{VTR} offset:{L_KT + es * 512 + hf * 256}")
            order = own + others
            for kb in order[:4]:
                for t in range(2):
                    smf(ACV + 4 * t, MA + 4 * kb, wfrag(WV, kb, t))
            a.e("s_waitcnt lgkmcnt(0)")
            for es in range(4):
                a.e(f"v_mfma_f32_16x16x32_bf16 {vr(SM, 4)}, {vr(B1 + 4 * es, 4)}, {vr(QT + 4 * es, 4)}, {'0' if es == 0 else vr(SM, 4)}")
            a.e(f"buffer_store_dwordx4 {vr(B1 + 4 * w, 4)}, v{VL16}, {S(SRD_WS)}, s{SKM} offen offset:{w * 1024} sc1")
            for kb in order[4:]:
                for t in range(2):
                    smf(ACV + 4 * t, MA + 4 * kb, wfrag(WV, kb, t))
            MX = ACK + 4
            a.e(f"v_max3_f32 v{MX}, v{SX}, v{SX + 1}, v{SX + 2}")
            a.e(f"v_max3_f32 v{MX}, v{MX}, v{SX + 3}, v{SX + 4}")
            a.e(f"v_max3_f32 v{MX}, v{MX}, v{SX + 5}, v{SX + 6}")
            a.e(f"v_max_f32 v{MX}, v{MX}, v{SX + 7}")
            for sw in ("v_permlane16_swap_b32", "v_permlane32_swap_b32"):
                a.e(f"v_mov_b32 v{T0}, v{MX}")
                a.e(f"{sw} v{MX}, v{T0}")
                a.e(f"v_max_f32 v{MX}, v{MX}, v{T0}")
            a.e(f"v_mul_f32 v{T0}, s{SC}, v{MX}")
            for i in range(8):
                a.e(f"v_fma_f32 v{SX + i}, v{SX + i}, s{SC}, -v{T0}")
                a.e(f"v_exp_f32 v{SX + i}, v{SX + i}")
            for i in range(4):
                a.e(f"v_cvt_pk_bf16_f32 v{T0 + i}, v{SX + 2 * i}, v{SX + 2 * i + 1}")
            for i in range(4):
                a.e(f"v_cndmask_b32 v{SX + i}, 0, v{T0 + i}, s[{MLO}:{MLO + 1}]")
                a.e(f"v_cndmask_b32 v{SX + 4 + i}, 0, v{T0 + i}, s[{MHI}:{MHI + 1}]")
            a.e(f"v_mfma_f32_16x16x32_bf16 {vr(LX, 4)}, {vr(ONES, 4)}, {vr(T0, 4)}, 0")
            for i in range(4):
                a.e(f"ds_read_b128 {vr(B1 + 4 * i, 4)}, v{VHI} offset:{L_KV + 8192 + i * 1024}")
            for i in range(4):
                a.e(f"ds_read_b128 {vr(MA + 4 * i, 4)}, v{VHI} offset:{L_KV + 8192 + 4096 + i * 1024}")
            VP2 = ACK + 6
            swap_add_pack(ACV, VP2)
            a.e(f"ds_write_b64 v{VV8}, {vr(VP2, 2)} offset:{L_VP + w * 512}")
            a.e(f"s_add_u32 s{S_T0}, s{SKM}, 4096")
            a.e(f"buffer_store_dwordx2 {vr(VP2, 2)}, v{VL8}, {S(SRD_WS)}, s{S_T0} offen offset:{w * 512} sc1")
            a.e(f"s_cmp_eq_u32 s{SS}, 63")
            a.e(f"s_cbranch_scc1 {END}")
            a.e("s_waitcnt lgkmcnt(0)")
            a.e("s_barrier")
            for i in range(8):
                src = B1 + 4 * i if i < 4 else MA + 4 * (i - 4)
                acc = vr(B2 + 4 * (i >> 1), 4)
                a.e(f"v_mfma_f32_16x16x32_bf16 {acc}, {vr(src, 4)}, {vr(SX + 4 * (i & 1), 4)}, {'0' if i % 2 == 0 else acc}")
            for i in range(4):
                a.e(f"ds_read_b64 {vr(VM + 2 * i, 2)}, v{VV8} offset:{L_VP + i * 512}")

            def wo_read(n):
                T, kb = divmod(n, 2)
                for hf in range(2):
                    a.e(f"ds_read_b128 {vr(MA + 8 * (n % 4) + 4 * hf, 4)}, v{VWO} offset:{(w & 1) * 32768 + kb * 16384 + T * 2048 + hf * 1024}")
            M2 = ACK + 5
            a.e(f"v_max3_f32 v{M2}, v{SM}, v{SM + 1}, v{SM + 2}")
            a.e(f"v_max3_f32 v{M2}, v{M2}, v{SM + 3}, v{MX}")
            a.e(f"v_mov_b32 v{T0}, v{M2}")
            a.e(f"v_permlane16_swap_b32 v{M2}, v{T0}")
            a.e(f"v_max_f32 v{M2}, v{M2}, v{T0}")
            a.e(f"v_mul_f32 v{T0}, s{SC}, v{M2}")
            a.e(f"v_fma_f32 v{MX}, v{MX}, s{SC}, -v{T0}")
            a.e(f"v_exp_f32 v{MX}, v{MX}")
            for i in range(4):
                a.e(f"v_fma_f32 v{SM + i}, v{SM + i}, s{SC}, -v{T0}")
                a.e(f"v_exp_f32 v{SM + i}, v{SM + i}")
            a.e(f"v_cvt_pk_bf16_f32 v{T0}, v{SM}, v{SM + 1}")
            a.e(f"v_cvt_pk_bf16_f32 v{T1}, v{SM + 2}, v{SM + 3}")
            a.e(f"v_cndmask_b32 v{PM}, 0, v{T0}, s[{MPM}:{MPM + 1}]")
            a.e(f"v_cndmask_b32 v{PM + 1}, 0, v{T1}, s[{MPM}:{MPM + 1}]")
            for n in range(3):
                wo_read(n)
            a.e(f"v_mul_f32 v{LX}, v{LX}, v{MX}")
            for i in range(16):
                a.e(f"v_mul_f32 v{B2 + i}, v{B2 + i}, v{MX}")
            a.e(f"v_mfma_f32_16x16x16_bf16 {vr(LX, 4)}, {vr(ONES, 2)}, {vr(PM, 2)}, {vr(LX, 4)}")
            a.e("s_waitcnt lgkmcnt(6)")
            for i in range(4):
                a.e(f"v_mfma_f32_16x16x16_bf16 {vr(B2 + 4 * i, 4)}, {vr(VM + 2 * i, 2)}, {vr(PM, 2)}, {vr(B2 + 4 * i, 4)}")
            for i in range(16):
                a.e(f"v_mov_b32 v{B1 + i}, 0")
            a.e(f"v_rcp_f32 v{T0}, v{LX}")
            for i in range(16):
                a.e(f"v_mul_f32 v{B2 + i}, v{B2 + i}, v{T0}")
            for i in range(8):
                a.e(f"v_cvt_pk_bf16_f32 v{OA + i}, v{B2 + 2 * i}, v{B2 + 2 * i + 1}")
            for tp in range(4):
                acc = B1 + 8 * (tp & 1)
                for tt in range(2):
                    for kb in range(2):
                        n = (2 * tp + tt) * 2 + kb
                        if n + 3 < 16:
                            wo_read(n + 3)
                        a.e(f"s_waitcnt lgkmcnt({2 * min(3, 15 - n)})")
                        smf(acc + 4 * tt, OA + 4 * kb, vr(MA + 8 * (n % 4), 8))
                if tp >= 1:
                    fin(a, B1 + 8 * ((tp - 1) & 1), SPST + tp - 1, swap_add_pack, STAG, VPST, st, zero=(tp < 3))
            fin(a, B1 + 8, SPST + 3, swap_add_pack, STAG, VPST, st, zero=False)
            a.label(f"{lt}_P1")
            for i in range(4):
                a.e(f"buffer_load_dwordx4 {vr(B2 + 4 * i, 4)}, v{VL16}, {S(SRD_WS)}, s{SPLD} offen offset:{i * 1024} sc1")
            a.e(f"s_sub_u32 s{SBUD}, s{SBUD}, 1")
            a.e(f"s_cbranch_scc1 {END}")
            a.e("s_waitcnt vmcnt(0)")
            a.e(f"v_xor_b32 v{T0}, s{STAG}, v{B2}")
            a.e(f"v_xor_b32 v{T1}, s{STAG}, v{B2 + 1}")
            for i in range(2, 16):
                t = T0 + (i & 1)
                a.e(f"v_bitop3_b32 v{t}, v{t}, v{B2 + i}, s{STAG} bitop3:0xf6")
            a.e(f"v_or_b32 v{T0}, v{T0}, v{T1}")
            a.e(f"v_and_b32 v{T0}, 63, v{T0}")
            a.e(f"v_cmp_ne_u32 vcc, 0, v{T0}")
            a.e(f"s_cbranch_vccnz {lt}_P1")
            for r in range(4):
                a.e(f"v_add_f32 v{B2 + r}, v{B2 + r}, v{B2 + 4 + r}")
                a.e(f"v_add_f32 v{B2 + 8 + r}, v{B2 + 8 + r}, v{B2 + 12 + r}")
            for r in range(4):
                a.e(f"v_add_f32 v{B2 + r}, v{B2 + r}, v{B2 + 8 + r}")
            a.e(f"v_permlane32_swap_b32 v{B2}, v{B2 + 1}")
            a.e(f"v_permlane32_swap_b32 v{B2 + 2}, v{B2 + 3}")
            a.e(f"v_add_f32 v{B2}, v{B2}, v{B2 + 1}")
            a.e(f"v_add_f32 v{B2 + 2}, v{B2 + 2}, v{B2 + 3}")
            a.e(f"v_permlane16_swap_b32 v{B2}, v{B2 + 2}")
            a.e(f"v_add_f32 v{B2}, v{B2}, v{B2 + 2}")
            a.e(f"v_add_f32_dpp v{B2}, v{B2}, v{B2} row_ror:8 row_mask:0xf bank_mask:0xf")
            a.e(f"v_mov_b32_dpp v{B2 + 1}, v{B2} quad_perm:[1,0,3,2] row_mask:0xf bank_mask:0xf")
            a.e(f"v_cvt_pk_bf16_f32 v{B2}, v{B2}, v{B2 + 1}")
            a.e(f"v_min_u32 v{B2}, -2, v{B2}")
            a.e(f"s_add_u32 s{SMOFF}, s{SMOFF}, 8192")
            a.e(f"s_add_u32 s{S_T0}, s{SMOFF}, s{SMST}")
            a.e(f"s_mov_b64 exec, s[{MEX}:{MEX + 1}]")
            a.e(f"buffer_store_dword v{B2}, v{VMST}, {S(SRD_WS)}, s{S_T0} offen{st}")
            a.e("s_mov_b64 exec, -1")
            a.e(f"s_add_u32 s{SS}, s{SS}, 1")
            a.e(f"s_add_u32 s{STAG}, s{STAG}, 1")
            a.e(f"s_add_u32 s{SKV}, s{SKV}, {32 * 16384}")
            a.e(f"s_add_u32 s{SKM}, s{SKM}, {32 * 8192}")
            a.e(f"s_branch {lt}")


def fin(a, acc, sps, swap_add_pack, STAG, VPST, st, zero):
    from gen import S, SRD_WS
    swap_add_pack(acc, None)
    for r in range(4):
        a.e(f"v_bfi_b32 v{acc + r}, 63, s{STAG}, v{acc + r}")
    a.e(f"buffer_store_dwordx4 {vr(acc, 4)}, v{VPST}, {S(SRD_WS)}, s{sps} offen{st}")
    if zero:
        for r in range(8):
            a.e(f"v_mov_b32 v{acc + (r + 4) % 8}, 0")
```

```python
import math
import os
import struct
import sys

sys.path.insert(0, os.path.dirname(__file__))
from asmdsl import Asm, vr

NAME = "gated_mix__memory_aug_recurrent_mem_tr__dense_activation_silu__prompt"

WS_KV = 0x0000000
WS_OX = 0x2000000
WS_HX = 0x3000000
WS_BG = 0x3800000
WS_G = 0x3A00000
WS_KM = 0x4000000
WS_P = 0x5000000
WS_M = 0x5100000
WS_SIZE = 0x10000000

P_X, P_MEM0, P_WQ, P_WK, P_WV, P_WO, P_W1, P_W2, P_GW, P_OUT, P_DBG, P_WS = 64, 66, 68, 70, 72, 74, 80, 82, 84, 86, 88, 90
SRD_WS = 4
SRD_A, SRD_B, SRD_C, SRD_D, SRD_X, SRD_E = 8, 12, 16, 20, 24, 28
S_W, S_H, S_XC, S_Y = 32, 33, 34, 35
S_T0, S_T1, S_T2, S_T3 = 36, 37, 38, 39

LOG2E = 1.4426950408889634
SCALE = 128 ** -0.5


def f32(x):
    return "0x%08x" % struct.unpack("<I", struct.pack("<f", x))[0]


def srd(a, d, p, nbytes):
    a.e(f"s_mov_b32 s{d}, s{p}")
    a.e(f"s_and_b32 s{d + 1}, s{p + 1}, 0xffff")
    a.e(f"s_mov_b32 s{d + 2}, {hex(nbytes)}")
    a.e(f"s_mov_b32 s{d + 3}, 0x20000")


def S(d):
    return f"s[{d}:{d + 3}]"


def common_prologue(a, tag):
    a.e("s_cmp_ge_u32 s2, 256")
    a.e(f"s_cbranch_scc1 {tag}_END")
    a.e("s_load_dwordx16 s[64:79], s[0:1], 0")
    a.e("s_load_dwordx8 s[80:87], s[0:1], 64")
    a.e("s_load_dwordx4 s[88:91], s[0:1], 96")
    a.e("v_lshrrev_b32 v1, 6, v0")
    a.e("v_and_b32 v0, 63, v0")
    a.e(f"v_readfirstlane_b32 s{S_W}, v1")
    a.e(f"s_and_b32 s{S_XC}, s2, 7")
    a.e(f"s_lshr_b32 s{S_Y}, s2, 3")
    a.e("s_waitcnt lgkmcnt(0)")
    srd(a, SRD_WS, P_WS, WS_SIZE)


WQ = ("v", 128)
WK = ("a", 0)
WV = ("a", 128)


def wfrag(home, kb, t, half=None):
    p, b = home
    base = b + (t * 8 + kb) * 8
    if half is None:
        return vr(base, 8, p)
    return vr(base + half * 4, 4, p)


def loader_a(a, panels, with_wo=False):
    VA, VB, VO, T0, T0H, T1, T1H, TMP, TMP2, G, R4, C4, F = range(100, 113)
    a.c("---- loader A")
    a.e(f"v_lshrrev_b32 v{G}, 4, v0")
    a.e(f"v_bfe_u32 v{TMP}, v0, 1, 3")
    a.e(f"v_xor_b32 v{TMP2}, v{TMP}, v{G}")
    a.e(f"v_lshlrev_b32 v{TMP2}, 5, v{TMP2}")
    a.e(f"v_and_b32 v{VA}, 1, v0")
    a.e(f"v_lshl_add_u32 v{TMP2}, v{VA}, 4, v{TMP2}")
    if with_wo:
        a.e(f"v_and_b32 v{VO}, 1, v{G}")
        a.e(f"s_lshl_b32 s{S_T0}, s{S_W}, 1")
        a.e(f"v_or_b32 v{VO}, s{S_T0}, v{VO}")
        a.e(f"v_xor_b32 v{VO}, v{VO}, v{TMP}")
        a.e(f"v_lshlrev_b32 v{VO}, 5, v{VO}")
        a.e(f"v_lshl_add_u32 v{VO}, v{VA}, 4, v{VO}")
        a.e(f"v_lshl_add_u32 v{VO}, v{G}, 10, v{VO}")
    stride = panels[0][2]
    assert all(p[2] == stride for p in panels)
    a.e(f"s_mov_b32 s{S_T0}, {stride}")
    a.e(f"v_mad_u32_u24 v{VA}, v{G}, s{S_T0}, v{TMP2}")
    a.e(f"v_xor_b32 v{VB}, 0x80, v{VA}")
    a.e(f"v_bfe_u32 v{R4}, v0, 2, 2")
    a.e(f"v_and_b32 v{C4}, 3, v0")
    a.e(f"v_and_b32 v{F}, 1, v{G}")
    a.e(f"v_lshl_or_b32 v{F}, v{F}, 2, v{R4}")
    a.e(f"s_lshl_b32 s{S_T0}, s{S_W}, 1")
    a.e(f"v_xor_b32 v{TMP}, s{S_T0}, v{F}")
    a.e(f"v_lshlrev_b32 v{TMP}, 5, v{TMP}")
    a.e(f"v_lshl_add_u32 v{TMP}, v{C4}, 3, v{TMP}")
    a.e(f"v_lshl_add_u32 v{TMP2}, v{G}, 3, v{R4}")
    a.e(f"v_lshl_add_u32 v{T0}, v{TMP2}, 8, v{TMP}")
    a.e(f"v_xor_b32 v{T1}, 32, v{T0}")
    a.e(f"v_add_u32 v{T0H}, 0x10000, v{T0}")
    a.e(f"v_add_u32 v{T1H}, 0x10000, v{T1}")
    a.e(f"s_mul_i32 s{S_T0}, s{S_W}, {16 * stride}")
    for i, p in enumerate(panels):
        a.e(f"s_add_u32 s{40 + i}, s{p[1]}, s{S_T0}")
    if with_wo:
        a.e(f"s_lshl_b32 s{S_T0}, s{S_W}, 14")
        a.e(f"s_lshl_b32 s{S_T1}, s{S_H}, 17")
        a.e(f"s_add_u32 s43, s{S_T0}, s{S_T1}")
    a.e(f"s_lshl_b32 s44, s{S_W}, 12")
    nq = len(panels) * 8
    nc = nq + (8 if with_wo else 0)

    def issue(c):
        slot = c % 8
        for ip in range(4):
            a.e(f"s_add_u32 s{S_T0}, s44, {slot * 16384 + ip * 1024}")
            a.e(f"s_mov_b32 m0, s{S_T0}")
            if c < nq:
                pi, kb = divmod(c, 8)
                a.e(f"s_add_u32 s{S_T1}, s{40 + pi}, {(kb * 64 + 4 * ip) * stride}")
                a.e(f"buffer_load_dwordx4 v{VA if ip < 2 else VB}, {S(panels[pi][0])}, s{S_T1} offen lds")
            else:
                j = c - nq
                wp, kb = divmod(j, 2)
                a.e(f"s_add_u32 s{S_T1}, s43, {(kb * 64 + 4 * ip) * 1024 + wp * 256}")
                a.e(f"buffer_load_dwordx4 v{VO}, {S(SRD_D)}, s{S_T1} offen lds")

    for c in range(min(7, nc)):
        issue(c)
    for c in range(nq):
        a.e(f"s_waitcnt vmcnt({4 * (min(c + 6, nc - 1) - c)})")
        a.e("s_barrier")
        if c + 7 < nc:
            issue(c + 7)
        pi, kb = divmod(c, 8)
        slot = c % 8
        p, b = panels[pi][3]
        for t in range(2):
            ad = ((T0, T0H), (T1, T1H))[t][slot // 4]
            for u in range(4):
                off = (slot % 4) * 16384 + (u >> 1) * 8192 + (u & 1) * 1024
                a.e(f"ds_read_b64_tr_b16 {vr(b + (t * 8 + kb) * 8 + 2 * u, 2, p)}, v{ad} offset:{off}")
        a.e("s_waitcnt lgkmcnt(0)")
    if with_wo:
        a.e("s_barrier")
        issue(nc - 1)
        a.e(f"v_and_b32 v{TMP}, 1, v{G}")
        a.e(f"v_lshlrev_b32 v{TMP}, 5, v{TMP}")
        a.e(f"v_lshrrev_b32 v{TMP2}, 1, v{R4}")
        a.e(f"v_lshl_add_u32 v{TMP}, v{TMP2}, 4, v{TMP}")
        a.e(f"v_lshrrev_b32 v{TMP2}, 1, v{G}")
        a.e(f"v_lshl_add_u32 v{TMP}, v{TMP2}, 2, v{TMP}")
        a.e(f"v_and_b32 v{TMP2}, 1, v{R4}")
        a.e(f"v_add_u32 v{TMP}, v{TMP}, v{TMP2}")
        a.e(f"v_lshlrev_b32 v{TMP}, 8, v{TMP}")
        a.e(f"v_lshl_add_u32 v{TMP}, v{F}, 5, v{TMP}")
        a.e(f"v_lshl_add_u32 v{TMP}, v{C4}, 3, v{TMP}")
        a.e(f"s_lshl_b32 s{S_T0}, s{S_W}, 15")
        a.e(f"v_add_u32 v{T0}, s{S_T0}, v{TMP}")
        a.e(f"v_lshlrev_b32 v{T1}, 4, v0")
        a.e(f"v_add_u32 v{T1}, s{S_T0}, v{T1}")
        a.e("s_waitcnt vmcnt(0)")
        a.e("s_barrier")
        for kb in range(2):
            for T in range(8):
                a.e(f"v_xor_b32 v{TMP}, {T * 32}, v{T0}")
                for u in range(4):
                    off = kb * 16384 + (u >> 1) * 2048 + (u & 1) * 512
                    a.e(f"ds_read_b64_tr_b16 {vr(20 + T * 8 + 2 * u, 2)}, v{TMP} offset:{off}")
                if T % 2 == 1:
                    a.e("s_waitcnt lgkmcnt(0)")
            for T in range(8):
                for hf in range(2):
                    a.e(f"ds_write_b128 v{T1}, {vr(20 + T * 8 + hf * 4, 4)} offset:{kb * 16384 + T * 2048 + hf * 1024}")
                if T % 4 == 3:
                    a.e("s_waitcnt lgkmcnt(0)")
    else:
        a.e("s_barrier")


def x_dma(a, sseg, buf, VX):
    a.e(f"s_lshl_b32 s{S_T0}, s{sseg}, 15")
    a.e(f"s_lshl_b32 s{S_T1}, s{S_W}, 8")
    a.e(f"s_add_u32 s{S_T0}, s{S_T0}, s{S_T1}")
    a.e(f"s_lshl_b32 s{S_T1}, s{S_W}, 12")
    for rt in range(2):
        for k4 in range(4):
            a.e(f"s_add_u32 s{S_T2}, s{S_T1}, {buf + rt * 16384 + k4 * 1024}")
            a.e(f"s_mov_b32 m0, s{S_T2}")
            a.e(f"s_add_u32 s{S_T3}, s{S_T0}, {rt * 16384 + k4 * 64}")
            a.e(f"buffer_load_dwordx4 v{VX}, {S(SRD_X)}, s{S_T3} offen lds")


def stream_gemm_x(a, tag, seg0, segstep, nseg_total, jobs, epilogue, pre=None, nxbuf=4):
    VX, VL = 1, 2
    SSEG, SNXT, SPAR = 46, 47, 48
    a.e(f"v_and_b32 v{VX}, 15, v0")
    a.e(f"v_lshlrev_b32 v{VX}, 10, v{VX}")
    a.e(f"v_lshrrev_b32 v3, 4, v0")
    a.e(f"v_lshl_add_u32 v{VX}, v3, 4, v{VX}")
    a.e(f"v_lshlrev_b32 v{VL}, 4, v0")
    a.e(f"s_mov_b32 s{SSEG}, s{seg0}")
    a.e(f"s_cmp_ge_u32 s{SSEG}, 64")
    a.e(f"s_cbranch_scc1 {tag}_DONE")
    x_dma(a, SSEG, 0, VX)
    for par in range(2):
        a.label(f"{tag}_L{par}")
        buf = par * 32768
        a.e("s_waitcnt vmcnt(0)")
        a.e("s_barrier")
        a.e(f"s_add_u32 s{SNXT}, s{SSEG}, {segstep}")
        a.e(f"s_cmp_ge_u32 s{SNXT}, 64")
        a.e(f"s_cbranch_scc1 {tag}_NOPF{par}")
        x_dma(a, SNXT, 32768 - buf, VX)
        a.label(f"{tag}_NOPF{par}")
        if pre:
            pre(a, SSEG, par)
        seq = [(rt, ks) for rt in range(2) for ks in range(16)]
        for i in range(nxbuf - 1):
            rt, ks = seq[i]
            a.e(f"ds_read_b128 {vr(4 + 4 * (i % nxbuf), 4)}, v{VL} offset:{buf + rt * 16384 + ks * 1024}")
        for i, (rt, ks) in enumerate(seq):
            j = i + nxbuf - 1
            if j < len(seq):
                rt2, ks2 = seq[j]
                a.e(f"ds_read_b128 {vr(4 + 4 * (j % nxbuf), 4)}, v{VL} offset:{buf + rt2 * 16384 + ks2 * 1024}")
            a.e(f"s_waitcnt lgkmcnt({min(nxbuf - 1, len(seq) - 1 - i)})")
            xf = vr(4 + 4 * (i % nxbuf), 4)
            for home, transposed, accb in jobs:
                for t in range(2):
                    acc = vr(accb + (rt * 2 + t) * 4, 4)
                    wf = wfrag(home, ks >> 1, t, ks & 1)
                    c = "0" if ks == 0 else acc
                    if transposed:
                        a.e(f"v_mfma_f32_16x16x32_bf16 {acc}, {wf}, {xf}, {c}")
                    else:
                        a.e(f"v_mfma_f32_16x16x32_bf16 {acc}, {xf}, {wf}, {c}")
        epilogue(a, SSEG, par)
        a.e(f"s_mov_b32 s{SSEG}, s{SNXT}")
        a.e(f"s_cmp_ge_u32 s{SSEG}, 64")
        a.e(f"s_cbranch_scc1 {tag}_DONE")
        if par == 1:
            a.e(f"s_branch {tag}_L0")
    a.label(f"{tag}_DONE")


def pack4(a, dst, s0, s1):
    a.e(f"v_cvt_pk_bf16_f32 v{dst}, v{s0}, v{s0 + 1}")
    a.e(f"v_cvt_pk_bf16_f32 v{dst + 1}, v{s0 + 2}, v{s0 + 3}")
    a.e(f"v_cvt_pk_bf16_f32 v{dst + 2}, v{s1}, v{s1 + 1}")
    a.e(f"v_cvt_pk_bf16_f32 v{dst + 3}, v{s1 + 2}, v{s1 + 3}")


def qkv_ids(a):
    a.e(f"s_sub_u32 s{S_T0}, s{S_XC}, 1")
    a.e(f"s_lshl_b32 s{S_T0}, s{S_T0}, 3")
    a.e(f"s_and_b32 s{S_T1}, s{S_Y}, 7")
    a.e(f"s_add_u32 s{S_H}, s{S_T0}, s{S_T1}")
    a.e(f"s_lshr_b32 s45, s{S_Y}, 3")


def role_kv(a, tag):
    qkv_ids(a)
    srd(a, SRD_B, P_WK, 0x400000)
    srd(a, SRD_C, P_WV, 0x400000)
    srd(a, SRD_X, P_X, 0x200000)
    a.e(f"s_lshl_b32 s49, s{S_H}, 8")
    loader_a(a, [(SRD_B, 49, 8192, WK), (SRD_C, 49, 8192, WV)])
    ACK, ACV = 32, 48

    def epi(a, sseg, par):
        a.e(f"s_lshl_b32 s{S_T0}, s{sseg}, 5")
        a.e(f"s_add_u32 s{S_T0}, s{S_T0}, s{S_H}")
        a.e(f"s_lshl_b32 s{S_T0}, s{S_T0}, 14")
        a.e(f"s_lshl_b32 s{S_T1}, s{S_W}, 10")
        a.e(f"s_add_u32 s{S_T2}, s{S_T0}, s{S_T1}")
        a.e(f"s_add_u32 s{S_T3}, s{S_T2}, s{S_T1}")
        a.e(f"s_add_u32 s{S_T3}, s{S_T3}, 8192")
        for kt in range(2):
            pack4(a, 64 + kt * 4, ACK + kt * 8, ACK + kt * 8 + 4)
        for t in range(2):
            pack4(a, 72 + t * 4, ACV + t * 4, ACV + 8 + t * 4)
        a.e(f"buffer_store_dwordx4 v[64:67], v2, {S(SRD_WS)}, s{S_T2} offen sc1")
        a.e(f"s_add_u32 s{S_T2}, s{S_T2}, 4096")
        a.e(f"buffer_store_dwordx4 v[68:71], v2, {S(SRD_WS)}, s{S_T2} offen sc1")
        a.e(f"buffer_store_dwordx4 v[72:75], v2, {S(SRD_WS)}, s{S_T3} offen sc1")
        a.e(f"buffer_store_dwordx4 v[76:79], v2, {S(SRD_WS)}, s{S_T3} offen offset:1024 sc1")

    stream_gemm_x(a, tag, 45, 4, 64, [(WK, True, ACK), (WV, False, ACV)], epi)


def role_attn(a, tag, load_wq=True):
    qkv_ids(a)
    srd(a, SRD_A, P_WQ, 0x400000)
    srd(a, SRD_X, P_X, 0x200000)
    a.e(f"s_lshl_b32 s49, s{S_H}, 8")
    if load_wq:
        loader_a(a, [(SRD_A, 49, 8192, WQ)])
    ACQ = 20
    KXF = 36
    KMF = 68
    VXF = 84
    VMF = 100
    QF = 104
    ONES = 120
    T = 124
    XQ = 65536
    MB = (58, 60, 62, 92)
    a.e(f"v_lshrrev_b32 v{T}, 4, v0")
    a.e(f"v_lshlrev_b32 v{T}, 2, v{T}")
    a.e(f"v_and_b32 v{T + 1}, 15, v0")
    a.e(f"s_and_b32 s{S_T0}, s{S_W}, 1")
    a.e(f"s_lshl_b32 s{S_T1}, s{S_T0}, 4")
    a.e(f"v_add_u32 v{T + 1}, s{S_T1}, v{T + 1}")
    for r in range(4):
        a.e(f"v_add_u32 v{T + 2}, {r}, v{T}")
        a.e(f"v_cmp_le_u32 s[{50 + 2 * r}:{51 + 2 * r}], v{T + 2}, v{T + 1}")
        a.e(f"v_add_u32 v{T + 2}, {16 + r}, v{T}")
        a.e(f"v_cmp_le_u32 s[{MB[r]}:{MB[r] + 1}], v{T + 2}, v{T + 1}")
    a.e("s_mov_b32 s94, -1")
    a.e("s_mov_b32 s95, 0")
    a.e("s_mov_b32 s96, 0")
    a.e("s_mov_b32 s97, -1")
    for i in range(4):
        a.e(f"v_mov_b32 v{ONES + i}, 0x3f803f80")
    a.e(f"s_mov_b32 s98, {f32(SCALE * LOG2E)}")
    a.e(f"s_mov_b32 s99, {f32(-1e9 / SCALE)}")
    a.e(f"s_lshr_b32 s100, s{S_W}, 1")
    a.e(f"s_and_b32 s101, s{S_W}, 1")
    a.e("v_lshlrev_b32 v3, 3, v0")

    def pre(a, sseg, par):
        a.e(f"s_lshl_b32 s{S_T0}, s{sseg}, 5")
        a.e(f"s_add_u32 s{S_T0}, s{S_T0}, s{S_H}")
        a.e(f"s_lshl_b32 s{S_T1}, s{S_T0}, 14")
        for i in range(8):
            a.e(f"s_add_u32 s{S_T2}, s{S_T1}, {WS_KV + i * 1024}")
            a.e(f"buffer_load_dwordx4 {vr(KXF + 4 * i, 4)}, v2, {S(SRD_WS)}, s{S_T2} offen")
        a.e(f"s_lshl_b32 s{S_T2}, s100, 12")
        a.e(f"s_add_u32 s{S_T1}, s{S_T1}, s{S_T2}")
        for i in range(4):
            a.e(f"s_add_u32 s{S_T2}, s{S_T1}, {WS_KV + 8192 + i * 1024}")
            a.e(f"buffer_load_dwordx4 {vr(VXF + 4 * i, 4)}, v2, {S(SRD_WS)}, s{S_T2} offen")
        a.e(f"s_lshl_b32 s{S_T1}, s{S_T0}, 13")
        a.e(f"s_add_u32 s{S_T1}, s{S_T1}, {WS_KM}")
        for i in range(4):
            a.e(f"buffer_load_dwordx4 {vr(KMF + 4 * i, 4)}, v2, {S(SRD_WS)}, s{S_T1} offen offset:{i * 1024}")
        a.e(f"s_lshl_b32 s{S_T2}, s100, 10")
        a.e(f"s_add_u32 s{S_T1}, s{S_T1}, s{S_T2}")
        a.e(f"s_add_u32 s{S_T1}, s{S_T1}, 4096")
        a.e("v_lshlrev_b32 v3, 3, v0")
        for i in range(2):
            a.e(f"buffer_load_dwordx2 {vr(VMF + 2 * i, 2)}, v3, {S(SRD_WS)}, s{S_T1} offen offset:{i * 512}")

    def epi(a, sseg, par):
        a.e(f"s_lshl_b32 s{S_T0}, s{S_W}, 10")
        a.e(f"v_add_u32 v{T}, s{S_T0}, v2")
        a.e(f"v_add_u32 v{T}, {XQ}, v{T}")
        for qt in range(2):
            pack4(a, 4 + qt * 4, ACQ + qt * 8, ACQ + qt * 8 + 4)
            a.e(f"ds_write_b128 v{T}, {vr(4 + qt * 4, 4)} offset:{qt * 4096}")
        a.e(f"s_lshl_b32 s{S_T0}, s101, 12")
        a.e(f"v_add_u32 v{T}, s{S_T0}, v2")
        a.e(f"v_add_u32 v{T}, {XQ}, v{T}")
        a.e("s_waitcnt lgkmcnt(0)")
        a.e("s_barrier")
        for es in range(4):
            a.e(f"ds_read_b128 {vr(QF + 4 * es, 4)}, v{T} offset:{es * 1024}")
        a.e("s_waitcnt vmcnt(0) lgkmcnt(0)")
        SM, S0, S1 = 20, 24, 28
        for es in range(4):
            a.e(f"v_mfma_f32_16x16x32_bf16 {vr(SM, 4)}, {vr(KMF + 4 * es, 4)}, {vr(QF + 4 * es, 4)}, {'0' if es == 0 else vr(SM, 4)}")
            a.e(f"v_mfma_f32_16x16x32_bf16 {vr(S0, 4)}, {vr(KXF + 4 * es, 4)}, {vr(QF + 4 * es, 4)}, {'0' if es == 0 else vr(S0, 4)}")
            a.e(f"v_mfma_f32_16x16x32_bf16 {vr(S1, 4)}, {vr(KXF + 16 + 4 * es, 4)}, {vr(QF + 4 * es, 4)}, {'0' if es == 0 else vr(S1, 4)}")
        a.e(f"v_mov_b32 v{T + 1}, s99")
        for r in range(4):
            a.e(f"v_cndmask_b32 v{S0 + r}, v{T + 1}, v{S0 + r}, s[{50 + 2 * r}:{51 + 2 * r}]")
            a.e(f"v_cndmask_b32 v{S1 + r}, v{T + 1}, v{S1 + r}, s[{MB[r]}:{MB[r] + 1}]")
        M = T
        a.e(f"v_max3_f32 v{M}, v{SM}, v{SM + 1}, v{SM + 2}")
        for i in range(3, 11, 2):
            a.e(f"v_max3_f32 v{M}, v{M}, v{SM + i}, v{SM + i + 1}")
        a.e(f"v_max_f32 v{M}, v{M}, v{SM + 11}")
        for sw in ("v_permlane16_swap_b32", "v_permlane32_swap_b32"):
            a.e(f"v_mov_b32 v{M + 1}, v{M}")
            a.e(f"{sw} v{M}, v{M + 1}")
            a.e(f"v_max_f32 v{M}, v{M}, v{M + 1}")
        a.e(f"v_mul_f32 v{M}, s98, v{M}")
        for i in range(12):
            a.e(f"v_fma_f32 v{SM + i}, v{SM + i}, s98, -v{M}")
            a.e(f"v_exp_f32 v{SM + i}, v{SM + i}")
        PX, PL, PH = 4, 8, 10
        pack4(a, PX, S0, S1)
        a.e(f"v_cvt_pk_bf16_f32 v{T}, v{SM}, v{SM + 1}")
        a.e(f"v_cvt_pk_bf16_f32 v{T + 1}, v{SM + 2}, v{SM + 3}")
        for i in range(2):
            a.e(f"v_cndmask_b32 v{PL + i}, 0, v{T + i}, s[94:95]")
            a.e(f"v_cndmask_b32 v{PH + i}, 0, v{T + i}, s[96:97]")
        ACO, L = 36, 32
        a.e(f"v_mfma_f32_16x16x32_bf16 {vr(L, 4)}, {vr(ONES, 4)}, {vr(PX, 4)}, 0")
        for i in range(4):
            a.e(f"v_mfma_f32_16x16x32_bf16 {vr(ACO + 4 * i, 4)}, {vr(VXF + 4 * i, 4)}, {vr(PX, 4)}, 0")
        a.e(f"v_mfma_f32_16x16x16_bf16 {vr(L, 4)}, {vr(ONES, 2)}, {vr(PL, 2)}, {vr(L, 4)}")
        for i in range(4):
            a.e(f"v_mfma_f32_16x16x16_bf16 {vr(ACO + 4 * i, 4)}, {vr(VMF + 2 * (i >> 1), 2)}, {vr(PH if i & 1 else PL, 2)}, {vr(ACO + 4 * i, 4)}")
        a.e(f"v_rcp_f32 v{T}, v{L}")
        for i in range(16):
            a.e(f"v_mul_f32 v{ACO + i}, v{ACO + i}, v{T}")
        a.e(f"s_lshl_b32 s{S_T0}, s{sseg}, 1")
        a.e(f"s_add_u32 s{S_T0}, s{S_T0}, s101")
        a.e(f"s_lshl_b32 s{S_T0}, s{S_T0}, 5")
        a.e(f"s_add_u32 s{S_T0}, s{S_T0}, s{S_H}")
        a.e(f"s_lshl_b32 s{S_T0}, s{S_T0}, 12")
        a.e(f"s_lshl_b32 s{S_T1}, s100, 11")
        a.e(f"s_add_u32 s{S_T0}, s{S_T0}, s{S_T1}")
        a.e(f"s_add_u32 s{S_T0}, s{S_T0}, {WS_OX}")
        for i in range(2):
            pack4(a, 12 + 4 * i - (0 if i == 0 else 0), ACO + 8 * i, ACO + 8 * i + 4)
            a.e(f"buffer_store_dwordx4 {vr(12 + 4 * i, 4)}, v2, {S(SRD_WS)}, s{S_T0} offen offset:{i * 1024} sc1")

    stream_gemm_x(a, tag, 45, 4, 64, [(WQ, True, ACQ)], epi, pre=pre)


def out_ids(a):
    a.e(f"s_sub_u32 s{S_T0}, s{S_XC}, 5")
    a.e(f"s_lshl_b32 s{S_T0}, s{S_T0}, 5")
    a.e(f"s_add_u32 s45, s{S_T0}, s{S_Y}")


def role_up(a, tag):
    out_ids(a)
    srd(a, SRD_A, P_W1, 512 * 1792 * 2)
    srd(a, SRD_X, P_X, 0x200000)
    a.e("s_cmp_ge_u32 s45, 91")
    a.e(f"s_cbranch_scc1 {tag}_GATE")
    a.e(f"s_mul_i32 s{S_T0}, s45, 147")
    a.e(f"s_lshr_b32 s50, s{S_T0}, 10")
    a.e(f"s_mul_i32 s{S_T0}, s50, 7")
    a.e(f"s_sub_u32 s51, s45, s{S_T0}")
    a.e("s_lshl_b32 s49, s51, 9")
    a.e("s_add_u32 s52, s49, 256")
    loader_a(a, [(SRD_A, 49, 3584, WK), (SRD_A, 52, 3584, WV)])
    AC0, AC1 = 32, 48
    a.e(f"s_mov_b32 s96, {f32(-LOG2E)}")

    def epi(a, sseg, par):
        a.e(f"s_mul_i32 s{S_T0}, s{sseg}, {2 * 56 * 1024}")
        a.e("s_lshl_b32 s37, s51, 3")
        a.e(f"s_add_u32 s{S_T1}, s{S_T1}, s{S_W}")
        a.e(f"s_lshl_b32 s{S_T1}, s{S_T1}, 10")
        a.e(f"s_add_u32 s{S_T0}, s{S_T0}, s{S_T1}")
        a.e(f"s_add_u32 s{S_T0}, s{S_T0}, {WS_HX}")
        for p, acb in enumerate((AC0, AC1)):
            for qt in range(2):
                b = acb + qt * 8
                pack4(a, 64, b, b + 4)
                for i in range(4):
                    a.e(f"v_lshlrev_b32 v{b + 2 * i}, 16, v{64 + i}")
                    a.e(f"v_and_b32 v{b + 2 * i + 1}, 0xffff0000, v{64 + i}")
                for i in range(8):
                    a.e(f"v_mul_f32 v{68 + i}, s96, v{b + i}")
                    a.e(f"v_exp_f32 v{68 + i}, v{68 + i}")
                for i in range(8):
                    a.e(f"v_add_f32 v{68 + i}, 1.0, v{68 + i}")
                    a.e(f"v_rcp_f32 v{68 + i}, v{68 + i}")
                for i in range(8):
                    a.e(f"v_mul_f32 v{b + i}, v{b + i}, v{68 + i}")
                d = 76 + 4 * ((p * 2 + qt) & 1)
                pack4(a, d, b, b + 4)
                a.e(f"s_add_u32 s{S_T1}, s{S_T0}, {qt * 56 * 1024 + p * 4096}")
                a.e(f"buffer_store_dwordx4 {vr(d, 4)}, v2, {S(SRD_WS)}, s{S_T1} offen sc1")

    stream_gemm_x(a, tag, 50, 13, 64, [(WK, True, AC0), (WV, True, AC1)], epi)
    a.e(f"s_branch {tag}_FIN")
    a.label(f"{tag}_GATE")
    srd(a, SRD_B, P_GW, 1024)
    a.e("s_sub_u32 s50, s45, 91")
    a.e("s_lshl_b32 s50, s50, 2")
    a.e(f"s_add_u32 s50, s50, s{S_W}")
    a.e("v_and_b32 v1, 15, v0")
    a.e("v_lshlrev_b32 v1, 4, v1")
    a.e("v_lshrrev_b32 v2, 4, v0")
    a.e("v_lshl_add_u32 v3, v2, 10, v1")
    for i in range(4):
        a.e(f"buffer_load_dwordx4 {vr(4 + 4 * i, 4)}, v1, {S(SRD_B)}, 0 offen offset:{256 * i}")
    a.e("v_mov_b32 v52, 0x3f803f80")
    a.e(f"s_mov_b32 s96, {f32(-LOG2E)}")
    a.e("s_waitcnt vmcnt(0)")
    for i in range(16):
        a.e(f"v_lshlrev_b32 v{20 + 2 * i}, 16, v{4 + i}")
        a.e(f"v_and_b32 v{21 + 2 * i}, 0xffff0000, v{4 + i}")
    a.e("v_and_b32 v53, 15, v0")
    a.e("v_cmp_eq_u32 s[54:55], 0, v53")
    a.label(f"{tag}_GL")
    a.e("s_lshl_b32 s51, s50, 12")
    for i in range(4):
        a.e(f"buffer_load_dwordx4 {vr(4 + 4 * i, 4)}, v3, {S(SRD_X)}, s51 offen offset:{256 * i}")
    a.e("v_mov_b32 v54, 0")
    a.e("s_waitcnt vmcnt(0)")
    for i in range(16):
        a.e(f"v_lshlrev_b32 v55, 16, v{4 + i}")
        a.e(f"v_and_b32 v56, 0xffff0000, v{4 + i}")
        a.e(f"v_mul_f32 v55, v55, v{20 + 2 * i}")
        a.e(f"v_mul_f32 v56, v56, v{21 + 2 * i}")
        a.e("v_cvt_pk_bf16_f32 v55, v55, v56")
        a.e("v_lshlrev_b32 v56, 16, v55")
        a.e("v_and_b32 v55, 0xffff0000, v55")
        a.e("v_add_f32 v54, v54, v56")
        a.e("v_add_f32 v54, v54, v55")
    for sh in (8, 4, 2, 1):
        a.e(f"v_add_f32_dpp v54, v54, v54 row_ror:{sh} row_mask:0xf bank_mask:0xf")
    a.e("v_cvt_pk_bf16_f32 v54, v54, v54")
    a.e("v_and_b32 v54, 0xffff0000, v54")
    a.e("v_mul_f32 v54, s96, v54")
    a.e("v_exp_f32 v54, v54")
    a.e("v_add_f32 v54, 1.0, v54")
    a.e("v_rcp_f32 v54, v54")
    a.e("v_cvt_pk_bf16_f32 v54, v54, v54")
    a.e("v_and_b32 v54, 0xffff0000, v54")
    a.e("s_lshl_b32 s51, s50, 4")
    a.e(f"s_add_u32 s51, s51, {WS_G}")
    a.e("v_lshlrev_b32 v55, 2, v2")
    a.e("s_mov_b64 exec, s[54:55]")
    a.e(f"buffer_store_dword v54, v55, {S(SRD_WS)}, s51 offen sc1")
    a.e("s_mov_b64 exec, -1")
    a.e("s_add_u32 s50, s50, 20")
    a.e("s_cmp_lt_u32 s50, 512")
    a.e(f"s_cbranch_scc1 {tag}_GL")
    a.label(f"{tag}_FIN")


def loader_b(a, wsrd, sbase, nks, ntile, homes):
    rowb = 32 * ntile
    rpi = 1024 // rowb
    ksb = 32 * rowb
    ipk = ksb // 1024
    kpr = 32768 // ksb
    VD, TA, TMP, TMP2, G, R4, C4 = range(100, 107)
    lpr = rowb // 16
    sh = int(math.log2(lpr))
    swsh = 1 if ntile == 4 else 2
    a.c("---- loader B")
    a.e(f"v_lshrrev_b32 v{G}, {sh}, v0")
    a.e(f"v_bfe_u32 v{TMP}, v0, 1, {sh - 1}")
    a.e(f"v_bfe_u32 v{TMP2}, v{G}, {swsh}, {sh - 1}")
    a.e(f"v_xor_b32 v{TMP}, v{TMP}, v{TMP2}")
    a.e(f"v_lshlrev_b32 v{TMP}, 5, v{TMP}")
    a.e(f"v_and_b32 v{TMP2}, 1, v0")
    a.e(f"v_lshl_add_u32 v{TMP}, v{TMP2}, 4, v{TMP}")
    a.e(f"v_lshl_add_u32 v{VD}, v{G}, 10, v{TMP}")
    a.e(f"v_lshrrev_b32 v{G}, 4, v0")
    a.e(f"v_bfe_u32 v{R4}, v0, 2, 2")
    a.e(f"v_and_b32 v{C4}, 3, v0")
    a.e(f"v_lshl_add_u32 v{TMP}, v{G}, 2, v{R4}")
    a.e(f"v_bfe_u32 v{TMP2}, v{TMP}, {swsh}, {sh - 1}")
    a.e(f"v_lshlrev_b32 v{TMP2}, 5, v{TMP2}")
    a.e(f"v_lshl_add_u32 v{TMP2}, v{C4}, 3, v{TMP2}")
    a.e(f"s_mov_b32 s{S_T0}, {rowb}")
    a.e(f"v_mad_u32_u24 v{TA}, v{TMP}, s{S_T0}, v{TMP2}")
    a.e(f"s_mul_i32 s44, s{S_W}, 40960")
    a.e(f"v_add_u32 v{TA}, s44, v{TA}")
    ks = 0
    while ks < nks:
        n = min(kpr, nks - ks)
        for i in range(n * ipk):
            a.e(f"s_add_u32 s{S_T0}, s44, {i * 1024}")
            a.e(f"s_mov_b32 m0, s{S_T0}")
            a.e(f"s_add_u32 s{S_T1}, s{sbase}, {(ks * 32 + i * rpi) * 1024}")
            a.e(f"buffer_load_dwordx4 v{VD}, {S(wsrd)}, s{S_T1} offen lds")
        a.e("s_waitcnt vmcnt(0)")
        for T in range(ntile):
            a.e(f"v_xor_b32 v{TMP}, {T * 32}, v{TA}")
            for k in range(n):
                p, b = homes(ks + k, T)
                for u in range(2):
                    a.e(f"ds_read_b64_tr_b16 {vr(b + 2 * u, 2, p)}, v{TMP} offset:{k * ksb + u * 16 * rowb}")
                if k % 4 == 3:
                    a.e("s_waitcnt lgkmcnt(0)")
            a.e("s_waitcnt lgkmcnt(0)")
        ks += n
    a.e("s_barrier")


def role_ksplit(a, tag, kind):
    out_ids(a)
    down = kind == "down"
    nks, ntile = (14, 4) if down else (32, 2)
    nsl = 8 if down else 16
    nrep = 96 // nsl
    srd(a, SRD_A, P_W2 if down else P_WO, 1792 * 1024 if down else 0x400000)
    srd(a, SRD_E, P_OUT, 0x200000)
    a.e(f"s_and_b32 s51, s45, {nsl - 1}")
    a.e(f"s_lshr_b32 s50, s45, {int(math.log2(nsl))}")
    a.e(f"s_mul_i32 s49, s{S_W}, {nks * 32 * 1024}")
    a.e(f"s_mul_i32 s{S_T0}, s51, {ntile * 32}")
    a.e(f"s_add_u32 s49, s49, s{S_T0}")

    def homes(ks, T):
        i = (ks * ntile + T) * 4
        return ("a", i)
    loader_b(a, SRD_A, 49, nks, ntile, homes)
    ACC = 4
    AF = 40
    NB = 16
    a.e("v_lshlrev_b32 v2, 4, v0")
    a.e(f"s_lshl_b32 s{S_T0}, s{S_W}, 13")
    a.e(f"v_add_u32 v3, s{S_T0}, v2")
    a.e("v_and_b32 v1, 15, v0")
    a.e("v_lshrrev_b32 v36, 4, v0")
    a.e("v_lshlrev_b32 v37, 10, v1")
    a.e("v_lshl_add_u32 v37, v36, 3, v37")
    a.e("v_lshlrev_b32 v38, 2, v1")
    segblk = 2 * 56 * 1024 if down else 2 * 32 * 4096
    qtblk = segblk // 2
    base = WS_HX if down else WS_OX
    a.e(f"s_mul_i32 s52, s{S_W}, {nks * 1024}")
    a.e(f"s_add_u32 s52, s52, {base}")
    a.label(f"{tag}_L")
    a.e(f"s_mul_i32 s53, s50, {segblk}")
    a.e("s_add_u32 s53, s53, s52")
    seq = [(qt, ks) for qt in range(2) for ks in range(nks)]

    def ld(i):
        qt, ks = seq[i]
        a.e(f"s_add_u32 s{S_T0}, s53, {qt * qtblk + ks * 1024}")
        a.e(f"buffer_load_dwordx4 {vr(AF + 4 * (i % NB), 4)}, v2, {S(SRD_WS)}, s{S_T0} offen")
    for i in range(NB - 1):
        ld(i)
    for i, (qt, ks) in enumerate(seq):
        if i + NB - 1 < len(seq):
            ld(i + NB - 1)
        a.e(f"s_waitcnt vmcnt({min(NB - 1, len(seq) - 1 - i)})")
        for T in range(ntile):
            acc = vr(ACC + (qt * ntile + T) * 4, 4)
            p, b = homes(ks, T)
            a.e(f"v_mfma_f32_16x16x32_bf16 {acc}, {vr(b, 4, p)}, {vr(AF + 4 * (i % NB), 4)}, {'0' if ks == 0 else acc}")
    nq = 2 * ntile
    a.e("s_barrier")
    for q in range(nq):
        a.e(f"ds_write_b128 v3, {vr(ACC + 4 * q, 4)} offset:{q * 1024}")
    a.e("s_waitcnt lgkmcnt(0)")
    a.e("s_barrier")
    per = nq // 4
    a.e(f"s_mul_i32 s{S_T0}, s{S_W}, {per * 1024}")
    a.e(f"v_add_u32 v39, s{S_T0}, v2")
    for j in range(per):
        for w2 in range(4):
            a.e(f"ds_read_b128 {vr(AF + (j * 4 + w2) * 4, 4)}, v39 offset:{w2 * 8192 + j * 1024}")
    a.e(f"s_lshr_b32 s{S_T0}, s{S_W}, 1")
    a.e(f"s_lshl_b32 s{S_T1}, s50, 1")
    a.e(f"s_add_u32 s{S_T0}, s{S_T0}, s{S_T1}")
    a.e(f"s_lshl_b32 s{S_T1}, s{S_T0}, 6")
    a.e(f"s_add_u32 s{S_T1}, s{S_T1}, {WS_G}")
    a.e(f"buffer_load_dword v104, v38, {S(SRD_WS)}, s{S_T1} offen")
    a.e(f"s_lshl_b32 s{S_T0}, s{S_T0}, 14")
    a.e(f"s_and_b32 s{S_T1}, s{S_W}, 1")
    a.e(f"s_mul_i32 s{S_T1}, s{S_T1}, {per * 32}")
    a.e(f"s_add_u32 s{S_T0}, s{S_T0}, s{S_T1}")
    a.e(f"s_mul_i32 s{S_T1}, s51, {ntile * 32}")
    a.e(f"s_add_u32 s{S_T0}, s{S_T0}, s{S_T1}")
    a.e(f"s_add_u32 s{S_T1}, s{S_T0}, {WS_BG}")
    if not down:
        a.e(f"buffer_load_dwordx2 v[106:107], v37, {S(SRD_WS)}, s{S_T1} offen")
    a.e("s_waitcnt lgkmcnt(0)")
    for j in range(per):
        b = AF + j * 16
        for r in range(4):
            a.e(f"v_add_f32 v{b + r}, v{b + r}, v{b + 4 + r}")
            a.e(f"v_add_f32 v{b + 8 + r}, v{b + 8 + r}, v{b + 12 + r}")
        for r in range(4):
            a.e(f"v_add_f32 v{b + r}, v{b + r}, v{b + 8 + r}")
        a.e(f"v_cvt_pk_bf16_f32 v{b + 4}, v{b}, v{b + 1}")
        a.e(f"v_cvt_pk_bf16_f32 v{b + 5}, v{b + 2}, v{b + 3}")
        for i in range(2):
            a.e(f"v_lshlrev_b32 v{b + 2 * i}, 16, v{b + 4 + i}")
            a.e(f"v_and_b32 v{b + 2 * i + 1}, 0xffff0000, v{b + 4 + i}")
    a.e("s_waitcnt vmcnt(0)")
    if down:
        a.e("v_sub_f32 v104, 1.0, v104")
        a.e("v_cvt_pk_bf16_f32 v104, v104, v104")
        a.e("v_and_b32 v104, 0xffff0000, v104")
    for j in range(per):
        b = AF + j * 16
        for r in range(4):
            a.e(f"v_mul_f32 v{b + r}, v{b + r}, v104")
        a.e(f"v_cvt_pk_bf16_f32 v{b + 4}, v{b}, v{b + 1}")
        a.e(f"v_cvt_pk_bf16_f32 v{b + 5}, v{b + 2}, v{b + 3}")
        if down:
            a.e(f"buffer_store_dwordx2 {vr(b + 4, 2)}, v37, {S(SRD_WS)}, s{S_T1} offen offset:{j * 32} sc1")
        else:
            for i in range(2):
                a.e(f"v_lshlrev_b32 v{b + 2 * i}, 16, v{b + 4 + i}")
                a.e(f"v_and_b32 v{b + 2 * i + 1}, 0xffff0000, v{b + 4 + i}")
                a.e(f"v_lshlrev_b32 v{b + 8 + 2 * i}, 16, v{106 + i}")
                a.e(f"v_and_b32 v{b + 8 + 2 * i + 1}, 0xffff0000, v{106 + i}")
            for r in range(4):
                a.e(f"v_add_f32 v{b + r}, v{b + r}, v{b + 8 + r}")
            a.e(f"v_cvt_pk_bf16_f32 v{b + 4}, v{b}, v{b + 1}")
            a.e(f"v_cvt_pk_bf16_f32 v{b + 5}, v{b + 2}, v{b + 3}")
            a.e(f"buffer_store_dwordx2 {vr(b + 4, 2)}, v37, {S(SRD_E)}, s{S_T0} offen")
    a.e(f"s_add_u32 s50, s50, {nrep}")
    a.e("s_cmp_lt_u32 s50, 64")
    a.e(f"s_cbranch_scc1 {tag}_L")


from chain import role_chain


def kernel(a, name, body):
    a.raw(f".globl {name}")
    a.raw(".p2align 8")
    a.raw(f".type {name},@function")
    a.label(name)
    tag = name.replace("_kernel", "").upper()
    common_prologue(a, tag)
    body(a, tag)
    a.label(f"{tag}_END")
    a.e("s_endpgm")


def dispatch(roles):
    def body(a, tag):
        for i, (lo, hi, fn) in enumerate(roles):
            a.e(f"s_cmp_lt_u32 s{S_XC}, {lo}")
            a.e(f"s_cbranch_scc1 {tag}_N{i}")
            a.e(f"s_cmp_gt_u32 s{S_XC}, {hi}")
            a.e(f"s_cbranch_scc1 {tag}_N{i}")
            fn(a, f"{tag}_R{i}")
            a.e(f"s_branch {tag}_END")
            a.label(f"{tag}_N{i}")
    return body


HEADER = open(os.path.join(os.path.dirname(__file__), "header.txt")).read()


def build(kernels):
    a = Asm()
    for name, body in kernels:
        kernel(a, name, body)
    txt = HEADER
    for name, _ in kernels:
        txt += f"; @launch kernel={name} grid=(256,1,1) block=(256,1,1) lds=163840\n"
    txt += '.amdgcn_target "amdgcn-amd-amdhsa--gfx950"\n.text\n'
    txt += a.render()
    txt += '.section .rodata,"a"\n'
    for name, _ in kernels:
        txt += f""".p2align 6
.amdhsa_kernel {name}
  .amdhsa_next_free_vgpr 512
  .amdhsa_next_free_sgpr 102
  .amdhsa_accum_offset 256
  .amdhsa_group_segment_fixed_size 0
  .amdhsa_float_denorm_mode_32 3
  .amdhsa_kernarg_size 112
  .amdhsa_user_sgpr_count 2
  .amdhsa_user_sgpr_kernarg_segment_ptr 1
  .amdhsa_system_sgpr_workgroup_id_x 1
.end_amdhsa_kernel
"""
    return txt


if __name__ == "__main__":
    kernels = [
        ("k1_kernel", dispatch([(1, 4, role_kv), (5, 7, role_up)])),
        ("k2_kernel", dispatch([(0, 0, role_chain), (5, 7, lambda a, t: role_ksplit(a, t, "down"))])),
        ("k3_kernel", dispatch([(1, 4, role_attn)])),
        ("k4_kernel", dispatch([(5, 7, lambda a, t: role_ksplit(a, t, "oproj"))])),
    ]
    out = sys.argv[1] if len(sys.argv) > 1 else f"cdna_kernels/{NAME}.s"
    open(out, "w").write(build(kernels))
    print("wrote", out)
```

```python
import re

_REG = re.compile(r"\b([vas])(?:(\d+)|\[(\d+):(\d+)\])|\b(vcc|exec|m0|scc)\b")
TRANS = ("v_exp_f32", "v_rcp_f32", "v_log_f32", "v_rsq_f32", "v_sqrt_f32", "v_sin_f32", "v_cos_f32")


def regs_of(tok):
    out = []
    for m in _REG.finditer(tok):
        if m.group(5):
            out.append(m.group(5))
        elif m.group(2) is not None:
            out.append(m.group(1) + m.group(2))
        else:
            out += [m.group(1) + str(i) for i in range(int(m.group(3)), int(m.group(4)) + 1)]
    return out


def split_ops(s):
    ops, depth, cur = [], 0, ""
    for ch in s:
        if ch == "[":
            depth += 1
        if ch == "]":
            depth -= 1
        if ch == "," and depth == 0:
            ops.append(cur.strip())
            cur = ""
        else:
            cur += ch
    if cur.strip():
        ops.append(cur.strip())
    return ops


class Ins:
    def __init__(self, text):
        self.text = text
        t = text.split(";")[0].strip()
        parts = t.split(None, 1)
        self.op = parts[0]
        rest = parts[1] if len(parts) > 1 else ""
        self.ops = split_ops(rest)
        op = self.op
        self.kind = "other"
        self.dst, self.src = [], []
        self.passes = 0
        self.srcC = []
        self.dpp = False
        o = self.ops
        if op.startswith("v_mfma") or op.startswith("v_smfmac"):
            self.kind = "mfma"
            self.passes = 8 if "32x32" in op else 4
            self.dst = regs_of(o[0])
            self.srcAB = regs_of(o[1]) + regs_of(o[2])
            if op.startswith("v_smfmac"):
                self.srcC = regs_of(o[0])
                self.srcAB += regs_of(o[3].split()[0])
            else:
                self.srcC = regs_of(o[3].split()[0])
            self.src = self.srcAB + self.srcC
        elif op.startswith("v_"):
            self.kind = "valu"
            self.dpp = "_dpp" in op or "quad_perm" in t or "row_" in t
            if op.startswith("v_permlane"):
                self.dst = regs_of(o[0]) + regs_of(o[1])
                self.src = list(self.dst)
                self.kind = "permlane"
            else:
                self.dst = regs_of(o[0])
                for x in o[1:]:
                    self.src += regs_of(x.split(" quad_perm")[0].split(" row_")[0])
                if op.startswith("v_fmac") or op.startswith("v_dot2c"):
                    self.src += self.dst
                if op.startswith("v_cndmask") and len(o) == 3:
                    self.src.append("vcc")
        elif op.startswith("buffer_") or op.startswith("global_"):
            self.kind = "vmem"
            is_lds = bool(re.search(r"\blds\b", t))
            allregs = [regs_of(x) for x in o]
            if "load" in op and not is_lds:
                self.dst = allregs[0]
                for x in allregs[1:]:
                    self.src += x
            else:
                for x in allregs:
                    self.src += x
                if is_lds:
                    self.src.append("m0")
                    self.kind = "vmem_lds"
            self.wide_store = ("store" in op) and ("x4" in op or "x3" in op)
            if self.wide_store:
                self.store_data = allregs[0] if op.startswith("buffer_") else allregs[1]
        elif op.startswith("ds_"):
            self.kind = "ds"
            allregs = [regs_of(x.split(" offset")[0]) for x in o]
            if "read" in op or "permute" in op or "swizzle" in op:
                self.dst = allregs[0]
                for x in allregs[1:]:
                    self.src += x
            else:
                for x in allregs:
                    self.src += x
        elif op.startswith("s_"):
            self.kind = "salu"
            if op in ("s_nop", "s_waitcnt", "s_barrier", "s_endpgm", "s_sleep", "s_setprio") or op.startswith("s_cbranch") or op == "s_branch":
                pass
            elif op.startswith("s_cmp") or op.startswith("s_bitcmp"):
                for x in o:
                    self.src += regs_of(x)
            else:
                self.dst = regs_of(o[0]) if o else []
                for x in o[1:]:
                    self.src += regs_of(x)

    def slots(self):
        if self.op == "s_nop":
            return int(self.ops[0], 0) + 1
        return 1


class Asm:
    def __init__(self):
        self.lines = []

    def e(self, text):
        for ln in text.strip("\n").split("\n"):
            ln = ln.strip()
            if ln:
                self.lines.append(ln)

    def label(self, name):
        self.lines.append(name + ":")

    def c(self, text):
        self.lines.append("; " + text)

    def raw(self, text):
        self.lines.append("@RAW " + text)

    def render(self):
        return fix_hazards(self.lines)


def fix_hazards(lines):
    out = []
    ws = 0
    valu_w = {}
    trans_w = {}
    vsg_w = {}
    mfma_w = {}
    mfma_c = {}
    st_data = {}
    m0_w = [-100]
    RD = {2: 5, 4: 8, 8: 12, 16: 20}
    OV = {2: 4, 4: 6, 8: 10, 16: 18}
    WAR = {2: 1, 4: 3, 8: 7, 16: 15}

    def need(ins):
        n = 0

        def req(slot, k):
            nonlocal n
            n = max(n, k - (ws - slot - 1))

        k = ins.kind
        if k == "mfma":
            for r in ins.src:
                if r in valu_w:
                    req(valu_w[r], 2)
            for r in ins.srcAB:
                if r in mfma_w:
                    req(mfma_w[r][0], RD[mfma_w[r][1]])
            for r in ins.srcC:
                if r in mfma_w:
                    s, p, d = mfma_w[r]
                    if d == ins.srcC and p == ins.passes:
                        req(s, 0 if p >= 4 else 2)
                    else:
                        req(s, OV[p])
            for r in ins.dst:
                if r in mfma_w and r not in ins.srcC:
                    req(mfma_w[r][0], OV[mfma_w[r][1]])
        elif k in ("valu", "permlane"):
            for r in ins.src + ins.dst:
                if r in mfma_w:
                    req(mfma_w[r][0], RD[mfma_w[r][1]])
            for r in ins.dst:
                if r in mfma_c:
                    req(mfma_c[r][0], WAR[mfma_c[r][1]])
                if r in st_data:
                    req(st_data[r], 2)
            for r in ins.src:
                if r in trans_w and ins.op not in TRANS:
                    req(trans_w[r], 1)
                if r in vsg_w:
                    req(vsg_w[r], 4 if ins.op.startswith(("v_readlane", "v_writelane")) else 2)
                if r in valu_w:
                    if k == "permlane" or ins.dpp:
                        req(valu_w[r], 2)
                    if ins.op.startswith(("v_readfirstlane", "v_readlane")):
                        req(valu_w[r], 1)
        elif k in ("vmem", "vmem_lds", "ds"):
            for r in ins.src + ins.dst:
                if r in mfma_w:
                    req(mfma_w[r][0], RD[mfma_w[r][1]])
            for r in ins.src:
                if r in vsg_w and k != "ds":
                    req(vsg_w[r], 5)
            for r in ins.dst:
                if r in st_data:
                    req(st_data[r], 1)
            if k == "vmem_lds":
                req(m0_w[0], 1)
        return n

    def drain():
        n = 0
        for s in valu_w.values():
            n = max(n, 2 - (ws - s - 1))
        for s in vsg_w.values():
            n = max(n, 5 - (ws - s - 1))
        for s, p, _ in mfma_w.values():
            n = max(n, RD[p] - (ws - s - 1))
        for s in st_data.values():
            n = max(n, 2 - (ws - s - 1))
        n = max(n, 1 - (ws - m0_w[0] - 1))
        return n

    def nops(n):
        nonlocal ws
        while n > 0:
            k = min(n, 16)
            out.append(f"  s_nop {k - 1}")
            ws += k
            n -= k

    for ln in lines:
        if ln.startswith("@RAW "):
            out.append(ln[5:])
            continue
        if ln.startswith(";"):
            out.append("  " + ln)
            continue
        if ln.endswith(":") and " " not in ln:
            nops(drain())
            out.append(ln)
            continue
        ins = Ins(ln)
        if ins.op.startswith("s_cbranch") or ins.op == "s_branch":
            nops(drain() - 1)
        else:
            nops(need(ins))
        out.append("  " + ln)
        slot = ws
        ws += ins.slots()
        k = ins.kind
        for r in ins.dst:
            valu_w.pop(r, None)
            trans_w.pop(r, None)
            vsg_w.pop(r, None)
            mfma_w.pop(r, None)
        if k == "mfma":
            for r in ins.dst:
                mfma_w[r] = (slot, ins.passes, ins.dst)
            for r in ins.srcC:
                mfma_c[r] = (slot, ins.passes)
        elif k in ("valu", "permlane"):
            for r in ins.dst:
                if r[0] in "va" and r != "vcc":
                    valu_w[r] = slot
                    if ins.op in TRANS:
                        trans_w[r] = slot
                else:
                    vsg_w[r] = slot
        elif k == "vmem" and getattr(ins, "wide_store", False):
            for r in ins.store_data:
                st_data[r] = slot
        elif k == "salu" and "m0" in ins.dst:
            m0_w[0] = slot
        if len(valu_w) > 64:
            for d in (valu_w, trans_w, vsg_w, st_data):
                for r in [r for r, s in d.items() if ws - s > 24]:
                    del d[r]
            for d in (mfma_w, mfma_c):
                for r in [r for r, s in d.items() if ws - s[0] > 24]:
                    del d[r]
    return "\n".join(out) + "\n"


def vr(base, n=1, p="v"):
    return f"{p}{base}" if n == 1 else f"{p}[{base}:{base + n - 1}]"


_uid = [0]


def uid():
    _uid[0] += 1
    return _uid[0]
```

```python
import os
from asmdsl import vr
STAMPS = int(os.environ.get("STAMPS", "0"))
WS_DBG = 0x5200000
DMAPOS = int(os.environ.get("DMAPOS", "0"))
NOEXP = int(os.environ.get("NOEXP", "0"))
ACKTEST = int(os.environ.get("ACKTEST", "0"))
DELAY1 = int(os.environ.get("DELAY1", "0"))
DELAY2 = int(os.environ.get("DELAY2", "0"))


def rt_stamp(a, idx, vt=(126, 127)):
    if not STAMPS:
        return
    from gen import S, SRD_WS
    a.e("s_memrealtime s[98:99]")
    a.e("s_waitcnt lgkmcnt(0)")
    a.e(f"v_mov_b32 v{vt[0]}, s98")
    a.e(f"v_mov_b32 v{vt[1]}, 0")
    a.e("s_lshl_b32 s98, s2, 6")
    a.e(f"s_add_u32 s98, s98, {WS_DBG + 0x10000 + idx * 4}")
    a.e(f"buffer_store_dword v{vt[0]}, v{vt[1]}, {S(SRD_WS)}, s98 offen")
    a.e("s_memtime s[100:101]")
    a.e("s_waitcnt lgkmcnt(0)")
    a.e(f"v_mov_b32 v{vt[0]}, s100")
    a.e(f"buffer_store_dword v{vt[0]}, v{vt[1]}, {S(SRD_WS)}, s98 offen offset:32")


def role_chain(a, tag):
    import gen as G
    from gen import S, srd, f32, wfrag, WQ, WK, WV, SRD_WS, SRD_A, SRD_B, SRD_C, SRD_D, SRD_E, SRD_X
    from gen import S_W, S_H, S_Y, S_T0, S_T1, S_T2, S_T3, WS_KV, WS_KM, WS_P, WS_M

    VWO, VHI, VIDX, VMLD, VXW, VTR, VV8, VPST, VL16, VL8, VMST = range(1, 12)
    VHIR = 0
    T0, T1, T2, T3 = 12, 13, 14, 15
    ONES = 16
    ACQ, ACK, ACV, ACO, AR, QT, B1, B2, SX = 20, 24, 28, 32, 48, 72, 88, 104, 120
    SM, MX = ACQ, ACK
    PX, PM, LX, OA, ROT, VM = QT, QT + 8, QT + 12, QT, QT + 8, SX
    L_KV, L_MEM, L_QT, L_KT, L_VP = 0, 16384, 24576, 26624, 28672
    SS, SMOFF, STAG, SKV, SPST, SPLD, SMST, SKM, SBUD = 45, 46, 47, 48, 50, 54, 55, 56, 57
    MLO, MHI, MPM, MEX, SC = 58, 60, 62, 92, 94
    END = tag.split("_R")[0] + "_END"

    a.e(f"s_mov_b32 s{S_H}, s{S_Y}")
    rt_stamp(a, 0)
    srd(a, SRD_A, G.P_WQ, 0x400000)
    srd(a, SRD_B, G.P_WK, 0x400000)
    srd(a, SRD_C, G.P_WV, 0x400000)
    srd(a, SRD_D, G.P_WO, 0x400000)
    srd(a, SRD_E, G.P_DBG, 256)
    srd(a, SRD_X, G.P_MEM0, 8192)
    a.e(f"v_lshlrev_b32 v{VL16}, 4, v0")
    a.e(f"v_lshlrev_b32 v{VL8}, 3, v0")
    a.e(f"s_lshl_b32 s{S_T0}, s{S_H}, 2")
    a.e(f"s_add_u32 s{S_T0}, s{S_T0}, s{S_W}")
    a.e(f"s_lshl_b32 s{S_T0}, s{S_T0}, 12")
    a.e(f"s_add_u32 s{SPLD}, s{S_T0}, {WS_P}")
    a.e(f"s_add_u32 s{S_T1}, s{S_T0}, {WS_M}")
    for i in range(4):
        a.e(f"v_mov_b32 v{24 + i}, -1")
    for i in range(4):
        a.e(f"buffer_store_dwordx4 v[24:27], v{VL16}, {S(SRD_WS)}, s{SPLD} offen offset:{i * 1024} sc1")
        a.e(f"buffer_store_dwordx4 v[24:27], v{VL16}, {S(SRD_WS)}, s{S_T1} offen offset:{i * 1024} sc1")
    a.e("v_mov_b64 v[20:21], 0")
    a.e(f"s_lshr_b32 s{S_T0}, s{S_T0}, 3")
    a.e(f"s_add_u32 s{S_T0}, s{S_T0}, {G.WS_F}")
    a.e(f"buffer_store_dwordx2 v[20:21], v{VL8}, {S(SRD_WS)}, s{S_T0} offen sc1")
    a.e(f"s_getreg_b32 s{S_T2}, hwreg(HW_REG_XCC_ID)")
    a.e(f"s_and_b32 s{S_T2}, s{S_T2}, 15")
    a.e(f"s_add_u32 s{S_T2}, s{S_T2}, 1")
    a.e(f"v_mov_b32 v20, s{S_T2}")
    a.e(f"s_lshl_b32 s{S_T3}, s{S_H}, 2")
    a.e("s_waitcnt vmcnt(0)")
    a.e("s_barrier")
    a.e(f"s_cmp_lg_u32 s{S_W}, 0")
    a.e(f"s_cbranch_scc1 {tag}_NOANN")
    a.e("v_mov_b32 v21, 0")
    a.e("s_mov_b64 exec, 1")
    a.e(f"buffer_store_dword v20, v21, {S(SRD_E)}, s{S_T3} offen sc1")
    a.e("s_mov_b64 exec, -1")
    a.e("s_waitcnt vmcnt(0)")
    a.label(f"{tag}_NOANN")
    rt_stamp(a, 1)
    a.e(f"s_lshl_b32 s49, s{S_H}, 8")
    G.loader_a(a, [(SRD_A, 49, 8192, WQ), (SRD_B, 49, 8192, WK), (SRD_C, 49, 8192, WV)], dual=True)
    rt_stamp(a, 2)
    a.e(f"s_lshr_b32 s{S_T0}, s{S_W}, 1")
    a.e(f"s_lshl_b32 s{S_T0}, s{S_T0}, 16")
    a.e(f"v_add_u32 v{VWO}, s{S_T0}, v{VL16}")
    a.e(f"v_add_u32 v{VHI}, 0x20000, v{VL16}")
    a.e(f"v_add_u32 v{VV8}, 0x20000, v{VL8}")
    a.e(f"v_bfe_u32 v{T0}, v0, 3, 1")
    a.e(f"v_mov_b32 v{VIDX}, 0x4444")
    a.e(f"v_mov_b32 v{T1}, 0xeeee")
    a.e(f"v_cmp_eq_u32 vcc, 1, v{T0}")
    a.e(f"v_cndmask_b32 v{VIDX}, v{VIDX}, v{T1}, vcc")
    a.e(f"v_lshrrev_b32 v{T1}, 4, v0")
    a.e(f"v_lshl_add_u32 v{T2}, v{T1}, 1, v{T0}")
    a.e(f"v_lshlrev_b32 v{T2}, 4, v{T2}")
    a.e(f"v_and_b32 v{T3}, 7, v0")
    a.e(f"v_lshl_add_u32 v{VMLD}, v{T3}, 10, v{T2}")
    a.e(f"v_lshrrev_b32 v{T0}, 5, v0")
    a.e(f"v_and_b32 v{T2}, 15, v0")
    a.e(f"v_lshl_add_u32 v{T3}, v{T0}, 4, v{T2}")
    a.e(f"v_and_b32 v{T1}, 1, v{T1}")
    a.e(f"v_lshlrev_b32 v{VXW}, 4, v{T3}")
    a.e(f"v_lshl_add_u32 v{VXW}, v{T1}, 3, v{VXW}")
    a.e(f"v_add_u32 v{VXW}, 0x20000, v{VXW}")
    a.e(f"v_lshrrev_b32 v{T3}, 3, v0")
    a.e(f"v_lshlrev_b32 v{VPST}, 12, v{T3}")
    a.e(f"s_and_b32 s{S_T0}, s{S_H}, 7")
    a.e(f"v_xor_b32 v{T3}, s{S_T0}, v{T3}")
    a.e(f"v_lshl_add_u32 v{VPST}, v{T3}, 6, v{VPST}")
    a.e(f"v_and_b32 v{T3}, 7, v0")
    a.e(f"v_lshl_add_u32 v{VPST}, v{T3}, 3, v{VPST}")
    a.e(f"v_lshrrev_b32 v{T1}, 4, v0")
    a.e(f"v_bfe_u32 v{T2}, v0, 2, 2")
    a.e(f"v_lshl_add_u32 v{T2}, v{T1}, 2, v{T2}")
    a.e(f"v_and_b32 v{T3}, 1, v0")
    a.e(f"v_lshlrev_b32 v{VTR}, 4, v{T2}")
    a.e(f"v_lshl_add_u32 v{VTR}, v{T3}, 3, v{VTR}")
    a.e(f"v_add_u32 v{VTR}, 0x20000, v{VTR}")
    a.e(f"v_and_b32 v{T2}, 1, v{T1}")
    a.e(f"v_lshlrev_b32 v{T2}, 1, v{T2}")
    a.e(f"v_lshrrev_b32 v{T3}, 1, v{T1}")
    a.e(f"v_or_b32 v{T2}, v{T2}, v{T3}")
    a.e(f"v_and_b32 v{T3}, 3, v0")
    a.e(f"v_lshlrev_b32 v{VMST}, 4, v{T2}")
    a.e(f"v_lshl_add_u32 v{VMST}, v{T3}, 2, v{VMST}")
    for i in range(4):
        a.e(f"v_mov_b32 v{ONES + i}, 0x3f803f80")
    a.e(f"s_lshl_b32 s{S_T0}, s{S_W}, 17")
    a.e(f"s_lshr_b32 s{S_T1}, s{S_H}, 3")
    for tp in range(4):
        a.e(f"s_xor_b32 s{S_T2}, s{S_T1}, {tp}")
        a.e(f"s_lshl_b32 s{S_T2}, s{S_T2}, 9")
        a.e(f"s_add_u32 s{S_T2}, s{S_T2}, s{S_T0}")
        a.e(f"s_add_u32 s{SPST + tp}, s{S_T2}, {WS_P + tp * 32768}")
    a.e(f"s_lshl_b32 s{S_T0}, s{S_H}, 8")
    a.e(f"s_lshr_b32 s{S_T1}, s{S_W}, 1")
    a.e(f"s_lshl_b32 s{S_T1}, s{S_T1}, 6")
    a.e(f"s_add_u32 s{S_T0}, s{S_T0}, s{S_T1}")
    a.e(f"s_and_b32 s{S_T1}, s{S_W}, 1")
    a.e(f"s_lshl_b32 s{S_T1}, s{S_T1}, 7")
    a.e(f"s_add_u32 s{S_T0}, s{S_T0}, s{S_T1}")
    a.e(f"s_lshl_b32 s{S_T1}, s{S_W}, 11")
    a.e(f"s_sub_u32 s{SMST}, s{S_T0}, s{S_T1}")
    a.e(f"s_mov_b32 s{MLO}, 0x00ff00ff")
    a.e(f"s_mov_b32 s{MLO + 1}, 0x00ff00ff")
    a.e(f"s_mov_b32 s{MHI}, 0xff00ff00")
    a.e(f"s_mov_b32 s{MHI + 1}, 0xff00ff00")
    a.e(f"s_mov_b32 s{MPM}, 0x00ff00ff")
    a.e(f"s_mov_b32 s{MPM + 1}, 0xff00ff00")
    a.e(f"s_mov_b32 s{MEX}, 0x000f000f")
    a.e(f"s_mov_b32 s{MEX + 1}, 0x000f000f")
    a.e(f"s_mov_b32 s{SC}, {f32(G.SCALE * G.LOG2E)}")
    a.e(f"s_mov_b32 s{SC + 1}, {f32(G.SCALE * G.LOG2E)}")
    a.e(f"s_mov_b32 s{SBUD}, 0x400000")
    a.e(f"s_mov_b32 s{SS}, 0")
    a.e("s_mov_b32 s96, 0")
    a.e(f"s_add_u32 s{SMOFF}, s{S_T1}, {WS_M}")
    a.e(f"s_lshl_b32 s{SKV}, s{S_H}, 14")
    a.e(f"s_lshl_b32 s{S_T0}, s{S_W}, 12")
    a.e(f"s_add_u32 s{SKV}, s{SKV}, s{S_T0}")
    a.e(f"s_lshl_b32 s{SKM}, s{S_H}, 13")
    a.e(f"s_add_u32 s{SKM}, s{SKM}, {WS_KM}")
    a.e(f"s_lshl_b32 s97, s{S_H}, 2")
    a.e(f"s_add_u32 s49, s97, {G.F_KM - 128}")
    a.e(f"s_add_u32 s97, s97, {G.F_KV}")
    a.e(f"v_and_b32 v{T0}, 31, v0")
    a.e(f"v_lshlrev_b32 v{T0}, 2, v{T0}")
    a.label(f"{tag}_HS")
    a.e(f"buffer_load_dword v{T1}, v{T0}, {S(SRD_E)}, 0 offen sc1")
    a.e(f"s_sub_u32 s{SBUD}, s{SBUD}, 1")
    a.e(f"s_cbranch_scc1 {END}")
    a.e("s_waitcnt vmcnt(0)")
    a.e(f"v_cmp_eq_u32 vcc, 0, v{T1}")
    a.e(f"s_cbranch_vccnz {tag}_HS")
    rt_stamp(a, 3)
    a.e(f"v_lshrrev_b32 v{T2}, 2, v0")
    a.e(f"v_and_b32 v{T3}, 3, v0")
    a.e(f"v_lshlrev_b32 v{T3}, 2, v{T3}")
    a.e(f"v_lshl_add_u32 v20, v{T2}, 10, v{T3}")
    a.e(f"v_lshl_add_u32 v21, v{T2}, 4, v{T3}")
    a.e(f"s_add_u32 s{S_T0}, s{SMST}, s{SMOFF}")
    a.e(f"s_lshl_b32 s{S_T1}, s{S_H}, 5")
    a.e(f"s_and_b32 s{S_T2}, s{S_W}, 1")
    a.e(f"s_lshl_b32 s{S_T2}, s{S_T2}, 4")
    a.e(f"s_add_u32 s{S_T1}, s{S_T1}, s{S_T2}")
    a.e(f"s_lshr_b32 s{S_T2}, s{S_W}, 1")
    a.e(f"s_lshl_b32 s{S_T2}, s{S_T2}, 12")
    a.e(f"s_add_u32 s{S_T1}, s{S_T1}, s{S_T2}")
    a.e("s_mov_b64 exec, 0xffff")
    a.e(f"buffer_load_dword v22, v20, {S(SRD_X)}, s{S_T1} offen")
    a.e("s_waitcnt vmcnt(0)")
    a.e("v_min_u32 v22, -2, v22")
    a.e(f"buffer_store_dword v22, v21, {S(SRD_WS)}, s{S_T0} offen sc1")
    a.e("s_mov_b64 exec, -1")
    G.wait_flags(a, 97, 1, END, vt=(20, 21), sleep=1)
    a.e("s_add_u32 s97, s97, 128")
    G.wait_flags(a, 97, 1, END, vt=(20, 21), sleep=1)
    a.e("s_add_u32 s97, s97, 128")
    a.e(f"v_mov_b32 v{T3}, 1")
    oseq = [(tp, kb, rot) for tp in range(4) for rot in range(2) for kb in range(2)]

    def wo_slot(tp, kb, rot):
        return kb * 16384 + (tp * 2 + rot) * 2048
    a.e(f"s_xor_b32 s{STAG}, s{SPLD}, 2048")
    a.e(f"v_xor_b32 v{VHIR}, 0x80, v{VHI}")
    a.e(f"v_lshlrev_b32 v{VMLD}, 3, v{VL16}")
    VTCH = VMLD
    a.e(f"v_readfirstlane_b32 s{S_T0}, v{T1}")
    a.e(f"v_cmp_ne_u32 vcc, s{S_T0}, v{T1}")
    a.e(f"s_cbranch_vccnz {tag}_SLOW")
    for slow in (0, 1):
        if slow:
            a.label(f"{tag}_SLOW")
        for w in range(1, 4):
            a.e(f"s_cmp_eq_u32 s{S_W}, {w}")
            a.e(f"s_cbranch_scc1 {tag}_W{w}M{slow}")
        for w in range(4):
            lt = f"{tag}_W{w}M{slow}"
            st = " sc1" if slow else ""
            lw = (w & 1) * 32768
            nst = [0]

            def stamp():
                if STAMPS:
                    a.e(f"s_memtime s[{64 + 2 * nst[0]}:{65 + 2 * nst[0]}]")
                    nst[0] += 1

            def smf(acc, af, bf):
                return f"v_smfmac_f32_16x16x64_bf16 {vr(acc, 4)}, {vr(af, 4)}, {bf}, v{VIDX}"

            def wq(kb, rot):
                return vr(wq_stage[(kb, rot)], 8) if (kb, rot) in wq_stage else wfrag(WQ, kb, rot)

            def weave(mf, pre=(), val=(), npre=2, nval=1):
                pre, val = list(pre), list(val)
                for m in mf:
                    a.e(m)
                    for _ in range(npre):
                        if pre:
                            a.e(pre.pop(0))
                    for _ in range(nval):
                        if val:
                            a.e(val.pop(0))
                for x in pre + val:
                    a.e(x)

            def idle_zero():
                for i in range(0, 28, 2):
                    a.e(f"v_mov_b64 {vr(ACQ + i, 2)}, 0")
                a.e(f"v_mov_b64 {vr(AR + 16, 2)}, -1")
                a.e(f"v_mov_b64 {vr(AR + 18, 2)}, -1")

            def idle_stage():
                for (kb, rot), stg in wq_stage.items():
                    for hf in range(2):
                        a.e(f"ds_read_b128 {vr(stg + 4 * hf, 4)}, v{VWO} offset:{lw + wq_slot[(kb, rot)] + hf * 1024}")

            def kv_dma():
                a.e(f"s_mov_b32 m0, {0x20000 + L_KV + w * 4096}")
                a.e("s_nop 0")
                for i in range(4):
                    a.e(f"buffer_load_dwordx4 v{VL16}, {S(SRD_WS)}, s{SKV} offen offset:{i * 1024} lds")

            own = [2 * w, 2 * w + 1]
            others = [(2 * w + i) % 8 for i in range(2, 8)]
            frs = [(kb, r) for kb in others for r in range(2)]
            wq_lds = [(own[0], 1), (own[1], 1)] + frs[:5]
            wq_slot = {key: wo_slot(*oseq[i]) for i, key in enumerate(wq_lds)}
            wo_home = {oseq[i]: 128 + (key[1] * 8 + key[0]) * 8 for i, key in enumerate(wq_lds)}
            wq_stage = dict(zip(wq_lds, [B1, B1 + 8, B2, B2 + 8, QT, QT + 8, SX]))
            a.label(lt)
            for i, key in enumerate(wq_lds):
                for hf in range(2):
                    a.e(f"ds_read_b128 {vr(72 + 8 * i + 4 * hf, 4)}, v{VWO} offset:{lw + wq_slot[key] + hf * 1024}")
            a.e("s_waitcnt lgkmcnt(0)")
            for i, key in enumerate(wq_lds):
                for hf in range(2):
                    a.e(f"ds_write_b128 v{VWO}, {vr(wo_home[oseq[i]] + 4 * hf, 4)} offset:{lw + wq_slot[key] + hf * 1024}")
            a.e("s_waitcnt lgkmcnt(0)")
            for i, key in enumerate(wq_lds):
                for r in range(0, 8, 2):
                    a.e(f"v_mov_b64 {vr(wo_home[oseq[i]] + r, 2)}, {vr(72 + 8 * i + r, 2)}")
            idle_zero()
            idle_stage()
            if DMAPOS == 0:
                kv_dma()
            rt_stamp(a, 4, (AR, AR + 1))
            a.label(f"{lt}_LOOP")
            stamp()
            a.label(f"{lt}_P2")
            for i, kb in enumerate(own):
                a.e(f"buffer_load_dwordx4 {vr(AR + 4 * i, 4)}, v{VL16}, {S(SRD_WS)}, s{SMOFF} offen offset:{(kb & 1) * 1024} sc1")
            a.e(f"s_sub_u32 s{SBUD}, s{SBUD}, 1")
            a.e(f"s_cbranch_scc1 {END}")
            a.e("s_waitcnt vmcnt(0)")
            m = AR
            a.e(f"v_max3_u32 v{T0}, v{m}, v{m + 1}, v{m + 2}")
            a.e(f"v_max3_u32 v{T1}, v{m + 3}, v{m + 4}, v{m + 5}")
            a.e(f"v_max3_u32 v{T0}, v{T0}, v{m + 6}, v{m + 7}")
            a.e(f"v_max_u32 v{T0}, v{T0}, v{T1}")
            a.e(f"v_cmp_eq_u32 vcc, -1, v{T0}")
            a.e(f"s_cbranch_vccnz {lt}_P2")
            stamp()
            for i, kb in enumerate(own):
                a.e(f"ds_write_b128 v{VHI}, {vr(AR + 4 * i, 4)} offset:{L_MEM + kb * 1024}")
            mf = []
            for i, kb in enumerate(own):
                mf += [smf(ACQ, AR + 4 * i, wq(kb, 0)), smf(ACK, AR + 4 * i, wfrag(WK, kb, 0))]
            for i, kb in enumerate(own):
                mf += [smf(ACV, AR + 4 * i, wfrag(WV, kb, 0))]
            rot = [f"v_mov_b32_dpp v{AR + 8 + i}, v{AR + i} row_ror:8 row_mask:0xf bank_mask:0xf" for i in range(8)]
            resets = [f"buffer_store_dwordx4 {vr(AR + 16, 4)}, v{VL16}, {S(SRD_WS)}, s{STAG} offen offset:{i * 1024}{st}" for i in range(2)]
            weave(mf, pre=resets, npre=1, val=rot)
            a.e("s_waitcnt lgkmcnt(0)")
            a.e("s_barrier")
            stamp()
            stream = frs + frs
            ring = [AR + 16, AR + 20, AR, AR + 4, AR + 8, AR + 12]

            def rd(i):
                kb, r = stream[i]
                return f"ds_read_b128 {vr(ring[i % 6], 4)}, v{VHIR if r else VHI} offset:{L_MEM + kb * 1024}"
            for i in range(4):
                a.e(rd(i))
            mf = []
            for i, kb in enumerate(own):
                mf += [smf(ACQ, AR + 8 + 4 * i, wq(kb, 1)), smf(ACK, AR + 8 + 4 * i, wfrag(WK, kb, 1)), smf(ACV, AR + 8 + 4 * i, wfrag(WV, kb, 1))]
            misc = [f"s_add_u32 s{S_T0}, s{SKV}, {32 * 16384}", f"s_add_u32 s{S_T1}, s{SMOFF}, 8192",
                    "s_mov_b64 exec, 0xffffffff",
                    f"buffer_load_dword v{T2}, v{VTCH}, {S(SRD_WS)}, s{S_T0} offen",
                    "s_mov_b64 exec, 0xffff",
                    f"buffer_load_dword v{T2}, v{VTCH}, {S(SRD_WS)}, s{S_T1} offen",
                    "s_mov_b64 exec, 1",
                    f"buffer_load_dword v{T3}, v{VL16}, {S(SRD_WS)}, s97 offen sc1"]
            if w == 0:
                misc += [f"buffer_store_dword v{VIDX}, v{VL16}, {S(SRD_WS)}, s49 offen sc1"]
            misc += ["s_mov_b64 exec, -1"]
            weave(mf[:2], pre=misc[:2])
            weave(mf[2:3], pre=misc[2:], npre=9)
            weave(mf[3:])
            kx_rd = [f"ds_read_b128 {vr(B1 + 4 * i, 4)}, v{VHI} offset:{L_KV + i * 1024}" for i in range(8)]
            q = ["r0", "r1", "r2", "r3"]

            def lds(ins, tg):
                a.e(ins)
                q.append(tg)

            def wait_for(tg, extra=""):
                if tg not in q:
                    return
                n = min(15, len(q) - 1 - q.index(tg))
                a.e(f"s_waitcnt {extra}lgkmcnt({n})")
                del q[:len(q) - n]
            for i in range(12):
                kb, r = stream[i]
                wait_for(f"r{i}")
                a.e(smf(ACQ, ring[i % 6], wq(kb, r)))
                lds(rd(i + 4), f"r{i + 4}")
                a.e(smf(ACK, ring[i % 6], wfrag(WK, kb, r)))
                if 3 <= i < 11:
                    lds(kx_rd[i - 3], f"kx{i - 3}")
            stamp()

            def vmf(i):
                kb, r = stream[i]
                return smf(ACV, ring[i % 6], wfrag(WV, kb, r))
            qt_rd = [f"ds_read_b64_tr_b16 {vr(QT + 4 * es + 2 * hf, 2)}, v{VTR} offset:{L_QT + es * 512 + hf * 256}" for es in range(4) for hf in range(2)]
            KMR = [ring[(18 + es) % 6] for es in range(4)]
            km_rd = [f"ds_read_b64_tr_b16 {vr(KMR[es] + 2 * hf, 2)}, v{VTR} offset:{L_KT + es * 512 + hf * 256}" for es in range(4) for hf in range(2)]
            for i in range(12, 15):
                wait_for(f"r{i}")
                a.e(vmf(i))
                lds(rd(i + 4), f"r{i + 4}")
            a.e(f"v_cvt_pk_bf16_f32 v{T0}, v{ACQ}, v{ACQ + 1}")
            a.e(f"v_cvt_pk_bf16_f32 v{T1}, v{ACQ + 2}, v{ACQ + 3}")
            a.e(f"v_cvt_pk_bf16_f32 v{ACK}, v{ACK}, v{ACK + 1}")
            a.e(f"v_cvt_pk_bf16_f32 v{ACK + 1}, v{ACK + 2}, v{ACK + 3}")
            lds(f"ds_write_b64 v{VXW}, {vr(T0, 2)} offset:{L_QT + w * 512}", "wq")
            lds(f"ds_write_b64 v{VXW}, {vr(ACK, 2)} offset:{L_KT + w * 512}", "wk")
            for i in range(15, 18):
                wait_for(f"r{i}")
                a.e(vmf(i))
                lds(rd(i + 4), f"r{i + 4}")
            wait_for("wk")
            a.e("s_barrier")
            stamp()
            for i in range(18, 24):
                wait_for(f"r{i}")
                a.e(vmf(i))
                if i < 20:
                    for j in range(4):
                        lds(qt_rd[4 * (i - 18) + j], f"qt{4 * (i - 18) + j}")
                    lds(rd(i + 4), f"r{i + 4}")
                else:
                    es = i - 20
                    lds(km_rd[2 * es], f"km{2 * es}"); lds(km_rd[2 * es + 1], f"km{2 * es + 1}")

            def smm(acc, ab, es):
                return f"v_mfma_f32_16x16x32_bf16 {vr(acc, 4)}, {vr(ab, 4)}, {vr(QT + 4 * es, 4)}, {'0' if es == 0 else vr(acc, 4)}"
            vx_rd = [f"ds_read_b128 {vr(B1 + 4 * i, 4)}, v{VHI} offset:{L_KV + 8192 + i * 1024}" for i in range(4)]
            vx_rd2 = [f"ds_read_b128 {vr(AR + 4 * i, 4)}, v{VHI} offset:{L_KV + 8192 + 4096 + i * 1024}" for i in range(4)]
            for es in range(4):
                wait_for(f"qt{2 * es + 1}")
                a.e(smm(SX, B1 + 4 * es, es))
            a.e(f"v_cvt_pk_bf16_f32 v{ACV}, v{ACV}, v{ACV + 1}")
            a.e(f"v_cvt_pk_bf16_f32 v{ACV + 1}, v{ACV + 2}, v{ACV + 3}")
            lds(f"ds_write_b64 v{VV8}, {vr(ACV, 2)} offset:{L_VP + w * 512}", "wv")
            for es in range(4):
                a.e(smm(SX + 4, B2 + 4 * es, es))
                lds(vx_rd[es], f"vx{es}")
                if es == 3:
                    a.e(f"v_max3_f32 v{MX}, v{SX}, v{SX + 1}, v{SX + 2}")
            wait_for("km7")
            for es in range(4):
                a.e(smm(SM, KMR[es], es))
                if es == 1 and not NOEXP:
                    a.e(f"buffer_store_dwordx4 {vr(KMR[w], 4)}, v{VL16}, {S(SRD_WS)}, s{SKM} offen offset:{w * 1024} sc1")
                if es == 2:
                    a.e(f"s_add_u32 s{S_T0}, s{SKM}, 4096")
                    if not NOEXP:
                        a.e(f"buffer_store_dwordx2 {vr(ACV, 2)}, v{VL8}, {S(SRD_WS)}, s{S_T0} offen offset:{w * 512} sc1")
                    a.e(f"v_max3_f32 v{MX}, v{MX}, v{SX + 3}, v{SX + 4}")
                    a.e(f"v_max3_f32 v{MX}, v{MX}, v{SX + 5}, v{SX + 6}")
            stamp()
            for x in vx_rd2:
                a.e(x)

            def wo_read(key, dst):
                return [f"ds_read_b128 {vr(dst + 4 * hf, 4)}, v{VWO} offset:{lw + wo_slot(*key) + hf * 1024}" for hf in range(2)]
            stage = {}
            stage[oseq[7]] = AR + 16
            for x in wo_read(oseq[7], AR + 16):
                a.e(x)
            a.e(f"v_max3_f32 v{MX}, v{MX}, v{SX + 7}, v{SM}")
            a.e(f"v_max3_f32 v{MX}, v{MX}, v{SM + 1}, v{SM + 2}")
            a.e(f"v_max_f32 v{MX}, v{MX}, v{SM + 3}")
            for sw in ("v_permlane16_swap_b32", "v_permlane32_swap_b32"):
                a.e(f"v_mov_b32 v{T0}, v{MX}")
                a.e(f"{sw} v{MX}, v{T0}")
                a.e(f"v_max_f32 v{MX}, v{MX}, v{T0}")
            a.e(f"s_cmp_eq_u32 s{SS}, 63")
            a.e(f"s_cbranch_scc1 {tag}_FIN")
            a.e(f"v_mul_f32 v{T0}, s{SC}, v{MX}")
            for i in range(0, 8, 2):
                a.e(f"v_pk_fma_f32 {vr(SX + i, 2)}, {vr(SX + i, 2)}, s[{SC}:{SC + 1}], {vr(T0, 2)} op_sel_hi:[1,1,0] neg_lo:[0,0,1] neg_hi:[0,0,1]")
            for i in range(8):
                a.e(f"v_exp_f32 v{SX + i}, v{SX + i}")
            for i in range(4):
                a.e(f"v_cvt_pk_bf16_f32 v{MX + i}, v{SX + 2 * i}, v{SX + 2 * i + 1}")
            for i in range(4):
                a.e(f"v_cndmask_b32 v{PX + i}, 0, v{MX + i}, s[{MLO}:{MLO + 1}]")
            for i in range(4):
                a.e(f"v_cndmask_b32 v{PX + 4 + i}, 0, v{MX + i}, s[{MHI}:{MHI + 1}]")
            vm_rd = [f"ds_read_b64 {vr(VM + 2 * i, 2)}, v{VV8} offset:{L_VP + i * 512}" for i in range(4)]
            a.e("s_waitcnt lgkmcnt(2)")
            a.e("s_barrier")
            mf = [f"v_mfma_f32_16x16x32_bf16 {vr(LX, 4)}, {vr(ONES, 4)}, {vr(MX, 4)}, 0"]
            for i in range(8):
                src = B1 + 4 * i if i < 4 else AR + 4 * (i - 4)
                acc = vr(B2 + 4 * (i >> 1), 4)
                mf.append(f"v_mfma_f32_16x16x32_bf16 {acc}, {vr(src, 4)}, {vr(PX + 4 * (i & 1), 4)}, {'0' if i % 2 == 0 else acc}")
            val = []
            for i in range(4):
                val.append(f"v_fma_f32 v{SM + i}, v{SM + i}, s{SC}, -v{T0}")
            for i in range(4):
                val.append(f"v_exp_f32 v{SM + i}, v{SM + i}")
            val += [f"v_cvt_pk_bf16_f32 v{T0}, v{SM}, v{SM + 1}", f"v_cvt_pk_bf16_f32 v{T1}, v{SM + 2}, v{SM + 3}",
                    f"v_cndmask_b32 v{PM}, 0, v{T0}, s[{MPM}:{MPM + 1}]", f"v_cndmask_b32 v{PM + 1}, 0, v{T1}, s[{MPM}:{MPM + 1}]"]
            stage[oseq[8]] = B1
            stage[oseq[9]] = B1 + 8
            pre = vm_rd + ["s_nop 0"] * 2 + wo_read(oseq[8], B1) + wo_read(oseq[9], B1 + 8)
            weave(mf, pre=pre, npre=2, val=val, nval=2)
            stage[oseq[10]] = AR
            stage[oseq[11]] = AR + 8
            stage[oseq[12]] = ACQ
            a.e("s_waitcnt lgkmcnt(4)")
            mf = [f"v_mfma_f32_16x16x16_bf16 {vr(LX, 4)}, {vr(ONES, 2)}, {vr(PM, 2)}, {vr(LX, 4)}"]
            for i in range(4):
                mf.append(f"v_mfma_f32_16x16x16_bf16 {vr(B2 + 4 * i, 4)}, {vr(VM + 2 * i, 2)}, {vr(PM, 2)}, {vr(B2 + 4 * i, 4)}")
            weave(mf, pre=wo_read(oseq[10], AR) + wo_read(oseq[11], AR + 8) + wo_read(oseq[12], ACQ), npre=2)
            stage[oseq[13]] = SX
            for x in wo_read(oseq[13], SX):
                a.e(x)
            a.e(f"v_rcp_f32 v{T0}, v{LX}")
            for i in range(0, 16, 2):
                a.e(f"v_pk_mul_f32 {vr(B2 + i, 2)}, {vr(B2 + i, 2)}, {vr(T0, 2)} op_sel_hi:[1,0]")
            for i in range(8):
                a.e(f"v_cvt_pk_bf16_f32 v{OA + i}, v{B2 + 2 * i}, v{B2 + 2 * i + 1}")
            stamp()
            stage[oseq[14]] = B2
            stage[oseq[15]] = B2 + 8
            rots = [f"v_mov_b32_dpp v{ROT + i}, v{OA + i} row_ror:8 row_mask:0xf bank_mask:0xf" for i in range(8)]

            def tagst(tp):
                b = ACO + 4 * tp
                return [f"v_cvt_pk_bf16_f32 v{b}, v{b}, v{b + 1}", f"v_cvt_pk_bf16_f32 v{b + 1}, v{b + 2}, v{b + 3}",
                        f"v_min_u32 v{b}, -2, v{b}", f"v_min_u32 v{b + 1}, -2, v{b + 1}"]

            def store(tp):
                return f"buffer_store_dwordx2 {vr(ACO + 4 * tp, 2)}, v{VPST}, {S(SRD_WS)}, s{SPST + tp} offen{st}"

            def omf(key):
                tp, kb, r = key
                bf = wo_home.get(key, stage.get(key))
                return smf(ACO + 4 * tp, (ROT if r else OA) + 4 * kb, vr(bf, 8))
            late = wo_read(oseq[14], B2) + wo_read(oseq[15], B2 + 8)
            o = oseq
            weave([omf(o[0]), omf(o[1])], pre=late, npre=2, val=rots[:6], nval=3)
            weave([omf(o[4])], val=rots[6:], nval=2)
            weave([omf(o[2]), omf(o[3]), omf(o[5]), omf(o[6])])
            a.e("s_waitcnt lgkmcnt(4)")
            weave([omf(o[7]), omf(o[8]), omf(o[9]), omf(o[10])], val=tagst(0), nval=1)
            weave([omf(o[11])], pre=[store(0)], val=tagst(1)[:1])
            weave([omf(o[12]), omf(o[13])], val=tagst(1)[1:3], nval=1)
            a.e("s_waitcnt lgkmcnt(0)")
            weave([omf(o[14])], val=tagst(1)[3:])
            weave([omf(o[15])], pre=[store(1)], val=tagst(2), nval=4)
            a.e(store(2))
            for x in tagst(3):
                a.e(x)
            a.e(store(3))
            stamp()
            a.e(f"s_add_u32 s{SS}, s{SS}, 1")
            a.e(f"s_add_u32 s{SKV}, s{SKV}, {32 * 16384}")
            a.e(f"s_add_u32 s{SKM}, s{SKM}, {32 * 8192}")
            a.e(f"s_add_u32 s{SMOFF}, s{SMOFF}, 8192")
            a.e(f"s_add_u32 s{S_T0}, s{SMOFF}, s{SMST}")
            a.e("s_barrier")
            idle_zero()
            for tp in range(4):
                a.e(f"s_xor_b32 s{SPST + tp}, s{SPST + tp}, 2048")
            for _ in range(DELAY1):
                a.e("s_nop 7")
            R = AR
            X = AR + 8

            def poll1():
                for i in range(2):
                    a.e(f"buffer_load_dwordx4 {vr(R + 4 * i, 4)}, v{VL16}, {S(SRD_WS)}, s{SPLD} offen offset:{i * 1024} sc1")
            poll1()
            idle_stage()
            a.e(f"s_branch {lt}_P1W")
            a.label(f"{lt}_P1")
            poll1()
            a.label(f"{lt}_P1W")
            if STAMPS:
                a.e("s_add_u32 s96, s96, 1")
            a.e(f"s_sub_u32 s{SBUD}, s{SBUD}, 1")
            a.e(f"s_cbranch_scc1 {END}")
            a.e("s_waitcnt vmcnt(0)")
            a.e(f"v_max3_u32 v{T0}, v{R}, v{R + 1}, v{R + 2}")
            a.e(f"v_max3_u32 v{T1}, v{R + 3}, v{R + 4}, v{R + 5}")
            a.e(f"v_max3_u32 v{T0}, v{T0}, v{R + 6}, v{R + 7}")
            a.e(f"v_max_u32 v{T0}, v{T0}, v{T1}")
            a.e(f"v_cmp_eq_u32 vcc, -1, v{T0}")
            for i in range(4):
                a.e(f"v_lshlrev_b32 v{X + 2 * i}, 16, v{R + i}")
                a.e(f"v_and_b32 v{X + 2 * i + 1}, 0xffff0000, v{R + i}")
            a.e(f"s_cbranch_vccnz {lt}_P1")
            stamp()
            for i in range(4):
                a.e(f"v_lshlrev_b32 v{R + ((2 * i) & 3)}, 16, v{R + 4 + i}")
                a.e(f"v_and_b32 v{R + ((2 * i) & 3) + 1}, 0xffff0000, v{R + 4 + i}")
                a.e(f"v_pk_add_f32 {vr(X + 2 * i, 2)}, {vr(X + 2 * i, 2)}, {vr(R + ((2 * i) & 3), 2)}")
            for i in range(4):
                a.e(f"v_permlane32_swap_b32 v{X + 2 * i}, v{X + 2 * i + 1}")
            for i in range(4):
                a.e(f"v_add_f32 v{X + 2 * i}, v{X + 2 * i}, v{X + 2 * i + 1}")
            a.e(f"v_permlane16_swap_b32 v{X}, v{X + 2}")
            a.e(f"v_permlane16_swap_b32 v{X + 4}, v{X + 6}")
            a.e(f"v_add_f32 v{X}, v{X}, v{X + 2}")
            a.e(f"v_add_f32 v{X + 4}, v{X + 4}, v{X + 6}")
            for sh in (8, 4):
                a.e(f"v_add_f32_dpp v{X}, v{X}, v{X} row_ror:{sh} row_mask:0xf bank_mask:0xf")
                a.e(f"v_add_f32_dpp v{X + 4}, v{X + 4}, v{X + 4} row_ror:{sh} row_mask:0xf bank_mask:0xf")
            a.e(f"v_cvt_pk_bf16_f32 v{R}, v{X}, v{X + 4}")
            a.e(f"v_min_u32 v{R}, -2, v{R}")
            a.e(f"s_mov_b64 exec, s[{MEX}:{MEX + 1}]")
            a.e(f"buffer_store_dword v{R}, v{VMST}, {S(SRD_WS)}, s{S_T0} offen{st}")
            a.e("s_mov_b64 exec, -1")
            a.e(f"s_mov_b32 s{STAG}, s{SPLD}")
            a.e(f"s_xor_b32 s{SPLD}, s{SPLD}, 2048")
            if DMAPOS == 0:
                kv_dma()
            stamp()
            if STAMPS:
                a.e(f"s_cmp_lg_u32 s{SS}, 41")
                a.e(f"s_cbranch_scc1 {lt}_NS")
                a.e("s_waitcnt lgkmcnt(0)")
                for i in range(nst[0]):
                    a.e(f"v_mov_b32 v{R + 4}, s{64 + 2 * i}")
                    a.e(f"v_mov_b32 v{R + 5}, 0")
                    a.e(f"s_lshl_b32 s{S_T0}, s{S_H}, 9")
                    a.e(f"s_add_u32 s{S_T0}, s{S_T0}, {WS_DBG + w * 128 + i * 4}")
                    a.e(f"buffer_store_dword v{R + 4}, v{R + 5}, {S(SRD_WS)}, s{S_T0} offen")
                a.e(f"v_mov_b32 v{R + 4}, s{SBUD}")
                a.e(f"s_lshl_b32 s{S_T0}, s{S_H}, 9")
                a.e(f"s_add_u32 s{S_T0}, s{S_T0}, {WS_DBG + w * 128 + 31 * 4}")
                a.e(f"buffer_store_dword v{R + 4}, v{R + 5}, {S(SRD_WS)}, s{S_T0} offen")
                a.e(f"v_mov_b32 v{R + 4}, s96")
                a.e(f"s_sub_u32 s{S_T0}, s{S_T0}, 4")
                a.e(f"buffer_store_dword v{R + 4}, v{R + 5}, {S(SRD_WS)}, s{S_T0} offen")
                a.label(f"{lt}_NS")
            a.e(f"v_cmp_ne_u32 vcc, 0, v{T3}")
            a.e("s_add_u32 s49, s49, 128")
            a.e(f"s_cmp_ge_u32 s{SS}, 63")
            a.e(f"s_cbranch_scc1 {lt}_LOOP")
            a.e(f"s_cmp_eq_u64 vcc, exec")
            a.e(f"s_cbranch_scc1 {lt}_FOK")
            G.wait_flags(a, 97, 1, END, vt=(AR + 20, AR + 21), sleep=1, lane_from=VL16)
            a.label(f"{lt}_FOK")
            a.e("s_add_u32 s97, s97, 128")
            for _ in range(DELAY2):
                a.e("s_nop 7")
            a.e(f"s_branch {lt}_LOOP")
    a.label(f"{tag}_FIN")
    a.e("s_waitcnt vmcnt(0)")
    a.e("s_barrier")
    a.e("s_add_u32 s49, s49, 128")
    G.set_flag(a, 49)
    rt_stamp(a, 5)
```

```python
import math
import os
import struct
import sys

sys.path.insert(0, os.path.dirname(__file__))
from asmdsl import Asm, vr

NAME = "gated_mix__memory_aug_recurrent_mem_tr__dense_activation_silu__prompt"

WS_KV = 0x0000000
WS_OX = 0x2000000
WS_HX = 0x3000000
WS_BG = 0x3800000
WS_G = 0x3A00000
WS_KM = 0x4000000
WS_P = 0x5000000
WS_M = 0x5100000
WS_F = 0x5300000
F_KV, F_KM, F_O, F_H, F_B, F_G = (WS_F + i * 0x2800 + 0x100 for i in range(6))
WS_SIZE = 0x10000000
MERGED = True

P_X, P_MEM0, P_WQ, P_WK, P_WV, P_WO, P_W1, P_W2, P_GW, P_OUT, P_DBG, P_WS = 64, 66, 68, 70, 72, 74, 80, 82, 84, 86, 88, 90
SRD_WS = 4
SRD_A, SRD_B, SRD_C, SRD_D, SRD_X, SRD_E = 8, 12, 16, 20, 24, 28
S_W, S_H, S_XC, S_Y = 32, 33, 34, 35
S_T0, S_T1, S_T2, S_T3 = 36, 37, 38, 39

LOG2E = 1.4426950408889634
SCALE = 128 ** -0.5


def f32(x):
    return "0x%08x" % struct.unpack("<I", struct.pack("<f", x))[0]


def srd(a, d, p, nbytes):
    a.e(f"s_mov_b32 s{d}, s{p}")
    a.e(f"s_and_b32 s{d + 1}, s{p + 1}, 0xffff")
    a.e(f"s_mov_b32 s{d + 2}, {hex(nbytes)}")
    a.e(f"s_mov_b32 s{d + 3}, 0x20000")


def S(d):
    return f"s[{d}:{d + 3}]"


def common_prologue(a, tag):
    a.e("s_cmp_ge_u32 s2, 256")
    a.e(f"s_cbranch_scc1 {tag}_END")
    a.e("s_load_dwordx16 s[64:79], s[0:1], 0")
    a.e("s_load_dwordx8 s[80:87], s[0:1], 64")
    a.e("s_load_dwordx4 s[88:91], s[0:1], 96")
    a.e("v_lshrrev_b32 v1, 6, v0")
    a.e("v_and_b32 v0, 63, v0")
    a.e(f"v_readfirstlane_b32 s{S_W}, v1")
    a.e(f"s_and_b32 s{S_XC}, s2, 7")
    a.e(f"s_lshr_b32 s{S_Y}, s2, 3")
    a.e("s_waitcnt lgkmcnt(0)")
    srd(a, SRD_WS, P_WS, WS_SIZE)


from asmdsl import uid


def wait_init(a, end, vt=(124, 125)):
    if not MERGED:
        return
    u = uid()
    srd(a, SRD_E, P_DBG, 256)
    a.e(f"v_and_b32 v{vt[0]}, 31, v0")
    a.e(f"v_lshlrev_b32 v{vt[0]}, 2, v{vt[0]}")
    a.e("s_mov_b32 s3, 0x100000")
    a.label(f"WI{u}")
    a.e(f"buffer_load_dword v{vt[1]}, v{vt[0]}, {S(SRD_E)}, 0 offen sc1")
    a.e("s_sub_u32 s3, s3, 1")
    a.e(f"s_cbranch_scc1 {end}")
    a.e("s_waitcnt vmcnt(0)")
    a.e(f"v_cmp_eq_u32 vcc, 0, v{vt[1]}")
    a.e(f"s_cbranch_vccnz WI{u}")


def set_flag(a, soff, vt=(124, 125)):
    if not MERGED:
        return
    u = uid()
    a.e(f"s_cmp_lg_u32 s{S_W}, 0")
    a.e(f"s_cbranch_scc1 SF{u}")
    a.e(f"v_mov_b32 v{vt[0]}, 0")
    a.e(f"v_mov_b32 v{vt[1]}, 1")
    a.e("s_mov_b64 exec, 1")
    a.e(f"buffer_store_dword v{vt[1]}, v{vt[0]}, {S(SRD_WS)}, s{soff} offen sc1")
    a.e("s_mov_b64 exec, -1")
    a.label(f"SF{u}")


def wait_flags(a, soff, n, end, vt=(124, 125), sleep=4, lane_from=None):
    if not MERGED:
        return
    u = uid()
    if n == 1:
        a.e(f"v_mov_b32 v{vt[0]}, 0")
    else:
        a.e(f"v_min_u32 v{vt[0]}, {n - 1}, v0")
        a.e(f"v_lshlrev_b32 v{vt[0]}, 2, v{vt[0]}")
    a.e("s_mov_b32 s3, 0x100000")
    a.e(f"s_branch WF{u}")
    a.label(f"WS{u}")
    a.e(f"s_sleep {sleep}")
    a.label(f"WF{u}")
    a.e(f"buffer_load_dword v{vt[1]}, v{vt[0]}, {S(SRD_WS)}, s{soff} offen sc1")
    a.e("s_sub_u32 s3, s3, 1")
    a.e(f"s_cbranch_scc1 {end}")
    a.e("s_waitcnt vmcnt(0)")
    a.e(f"v_cmp_eq_u32 vcc, 0, v{vt[1]}")
    a.e(f"s_cbranch_vccnz WS{u}")


def endof(tag):
    return tag.split("_R")[0] + "_END"


WQ = ("v", 128)
WK = ("a", 0)
WV = ("a", 128)


def wfrag(home, kb, t, half=None):
    p, b = home
    base = b + (t * 8 + kb) * 8
    if half is None:
        return vr(base, 8, p)
    return vr(base + half * 4, 4, p)


def loader_a(a, panels, dual=False):
    VA, VB, VO, T0, T0H, T1, T1H, TMP, TMP2, G, R4, C4, F = range(100, 113)
    with_wo = dual
    a.c("---- loader A")
    a.e(f"v_lshrrev_b32 v{G}, 4, v0")
    a.e(f"v_bfe_u32 v{TMP}, v0, 1, 3")
    if dual:
        a.e(f"v_and_b32 v{TMP2}, 1, v{G}")
        a.e(f"v_lshlrev_b32 v{TMP2}, 1, v{TMP2}")
        a.e(f"v_xor_b32 v{TMP2}, v{TMP}, v{TMP2}")
    else:
        a.e(f"v_xor_b32 v{TMP2}, v{TMP}, v{G}")
    a.e(f"v_lshlrev_b32 v{TMP2}, 5, v{TMP2}")
    a.e(f"v_and_b32 v{VA}, 1, v0")
    a.e(f"v_lshl_add_u32 v{TMP2}, v{VA}, 4, v{TMP2}")
    if with_wo:
        a.e(f"s_lshr_b32 s{S_T0}, s{S_W}, 1")
        a.e(f"s_lshl_b32 s{S_T0}, s{S_T0}, 7")
        a.e(f"v_xor_b32 v{VO}, s{S_T0}, v{TMP2}")
        a.e(f"v_lshl_add_u32 v{VO}, v{G}, 10, v{VO}")
    stride = panels[0][2]
    assert all(p[2] == stride for p in panels)
    a.e(f"s_mov_b32 s{S_T0}, {stride}")
    a.e(f"v_mad_u32_u24 v{VA}, v{G}, s{S_T0}, v{TMP2}")
    a.e(f"v_xor_b32 v{VB}, 0x80, v{VA}")
    a.e(f"v_bfe_u32 v{R4}, v0, 2, 2")
    a.e(f"v_and_b32 v{C4}, 3, v0")
    a.e(f"s_lshl_b32 s{S_T0}, s{S_W}, 1")
    if dual:
        a.e(f"v_and_b32 v{F}, 1, v{R4}")
        a.e(f"v_lshlrev_b32 v{F}, 1, v{F}")
        a.e(f"v_and_b32 v{TMP}, 1, v{G}")
        a.e(f"v_lshl_or_b32 v{F}, v{TMP}, 2, v{F}")
        a.e(f"v_lshrrev_b32 v{TMP2}, 1, v{R4}")
        a.e(f"v_xor_b32 v{F}, v{F}, v{TMP2}")
        a.e(f"v_xor_b32 v{T0}, s{S_T0}, v{F}")
        a.e(f"v_lshlrev_b32 v{T0}, 5, v{T0}")
        a.e(f"v_lshl_add_u32 v{T0}, v{C4}, 3, v{T0}")
        a.e(f"v_lshlrev_b32 v{TMP}, 2, v{TMP}")
        a.e(f"v_lshl_add_u32 v{TMP}, v{TMP2}, 3, v{TMP}")
        a.e(f"v_lshrrev_b32 v{TMP2}, 1, v{G}")
        a.e(f"v_lshl_add_u32 v{TMP}, v{TMP2}, 4, v{TMP}")
        a.e(f"v_and_b32 v{TMP2}, 1, v{R4}")
        a.e(f"v_add_u32 v{TMP}, v{TMP}, v{TMP2}")
        a.e(f"v_lshl_add_u32 v{T0}, v{TMP}, 8, v{T0}")
        a.e(f"v_xor_b32 v{T1}, 0x800, v{T0}")
        ustep = 512
    else:
        a.e(f"v_and_b32 v{F}, 1, v{G}")
        a.e(f"v_lshl_or_b32 v{F}, v{F}, 2, v{R4}")
        a.e(f"v_xor_b32 v{TMP}, s{S_T0}, v{F}")
        a.e(f"v_lshlrev_b32 v{TMP}, 5, v{TMP}")
        a.e(f"v_lshl_add_u32 v{TMP}, v{C4}, 3, v{TMP}")
        a.e(f"v_lshl_add_u32 v{TMP2}, v{G}, 3, v{R4}")
        a.e(f"v_lshl_add_u32 v{T0}, v{TMP2}, 8, v{TMP}")
        a.e(f"v_xor_b32 v{T1}, 32, v{T0}")
        ustep = 1024
    a.e(f"v_add_u32 v{T0H}, 0x10000, v{T0}")
    a.e(f"v_add_u32 v{T1H}, 0x10000, v{T1}")
    a.e(f"s_mul_i32 s{S_T0}, s{S_W}, {16 * stride}")
    for i, p in enumerate(panels):
        a.e(f"s_add_u32 s{40 + i}, s{p[1]}, s{S_T0}")
    if with_wo:
        a.e(f"s_lshl_b32 s{S_T0}, s{S_W}, 14")
        a.e(f"s_lshl_b32 s{S_T1}, s{S_H}, 17")
        a.e(f"s_add_u32 s43, s{S_T0}, s{S_T1}")
    a.e(f"s_lshl_b32 s44, s{S_W}, 12")
    nq = len(panels) * 8
    nc = nq + (8 if with_wo else 0)

    def issue(c):
        slot = c % 8
        for ip in range(4):
            a.e(f"s_add_u32 s{S_T0}, s44, {slot * 16384 + ip * 1024}")
            a.e(f"s_mov_b32 m0, s{S_T0}")
            if c < nq:
                pi, kb = divmod(c, 8)
                a.e(f"s_add_u32 s{S_T1}, s{40 + pi}, {(kb * 64 + 4 * ip) * stride}")
                useb = (ip & 1) if dual else (ip >= 2)
                a.e(f"buffer_load_dwordx4 v{VB if useb else VA}, {S(panels[pi][0])}, s{S_T1} offen lds")
            else:
                j = c - nq
                wp, kb = divmod(j, 2)
                a.e(f"s_add_u32 s{S_T1}, s43, {(kb * 64 + 4 * ip) * 1024 + wp * 256}")
                a.e(f"buffer_load_dwordx4 v{VO}, {S(SRD_D)}, s{S_T1} offen lds")

    for c in range(min(7, nc)):
        issue(c)
    for c in range(nq):
        a.e(f"s_waitcnt vmcnt({4 * (min(c + 6, nc - 1) - c)})")
        a.e("s_barrier")
        if c + 7 < nc:
            issue(c + 7)
        pi, kb = divmod(c, 8)
        slot = c % 8
        p, b = panels[pi][3]
        for t in range(2):
            ad = ((T0, T0H), (T1, T1H))[t][slot // 4]
            for u in range(4):
                off = (slot % 4) * 16384 + (u >> 1) * 8192 + (u & 1) * ustep
                a.e(f"ds_read_b64_tr_b16 {vr(b + (t * 8 + kb) * 8 + 2 * u, 2, p)}, v{ad} offset:{off}")
        a.e("s_waitcnt lgkmcnt(0)")
    if with_wo:
        a.e("s_barrier")
        issue(nc - 1)
        a.e(f"v_and_b32 v{TMP}, 1, v{G}")
        a.e(f"v_lshlrev_b32 v{TMP}, 5, v{TMP}")
        a.e(f"v_lshrrev_b32 v{TMP2}, 1, v{R4}")
        a.e(f"v_lshl_add_u32 v{TMP}, v{TMP2}, 4, v{TMP}")
        a.e(f"v_lshrrev_b32 v{TMP2}, 1, v{G}")
        a.e(f"v_lshl_add_u32 v{TMP}, v{TMP2}, 2, v{TMP}")
        a.e(f"v_and_b32 v{TMP2}, 1, v{R4}")
        a.e(f"v_add_u32 v{TMP}, v{TMP}, v{TMP2}")
        a.e(f"v_lshlrev_b32 v{TMP}, 8, v{TMP}")
        a.e(f"v_lshl_add_u32 v{TMP}, v{F}, 5, v{TMP}")
        a.e(f"v_lshl_add_u32 v{TMP}, v{C4}, 3, v{TMP}")
        a.e(f"s_lshl_b32 s{S_T0}, s{S_W}, 15")
        a.e(f"v_add_u32 v{T0}, s{S_T0}, v{TMP}")
        a.e(f"v_lshlrev_b32 v{T1}, 4, v0")
        a.e(f"v_add_u32 v{T1}, s{S_T0}, v{T1}")
        a.e("s_waitcnt vmcnt(0)")
        a.e("s_barrier")
        for kb in range(2):
            for n in range(8):
                tp, rot = divmod(n, 2)
                a.e(f"v_xor_b32 v{TMP}, {tp * 64 + rot * 4096}, v{T0}")
                for u in range(4):
                    off = kb * 16384 + (u >> 1) * 2048 + (u & 1) * 512
                    a.e(f"ds_read_b64_tr_b16 {vr(20 + n * 8 + 2 * u, 2)}, v{TMP} offset:{off}")
                if n % 2 == 1:
                    a.e("s_waitcnt lgkmcnt(0)")
            for n in range(8):
                for hf in range(2):
                    a.e(f"ds_write_b128 v{T1}, {vr(20 + n * 8 + hf * 4, 4)} offset:{kb * 16384 + n * 2048 + hf * 1024}")
                if n % 4 == 3:
                    a.e("s_waitcnt lgkmcnt(0)")
    else:
        a.e("s_barrier")


def x_dma(a, sseg, buf, VX):
    a.e(f"s_lshl_b32 s{S_T0}, s{sseg}, 15")
    a.e(f"s_lshl_b32 s{S_T1}, s{S_W}, 8")
    a.e(f"s_add_u32 s{S_T0}, s{S_T0}, s{S_T1}")
    a.e(f"s_lshl_b32 s{S_T1}, s{S_W}, 12")
    for rt in range(2):
        for k4 in range(4):
            a.e(f"s_add_u32 s{S_T2}, s{S_T1}, {buf + rt * 16384 + k4 * 1024}")
            a.e(f"s_mov_b32 m0, s{S_T2}")
            a.e(f"s_add_u32 s{S_T3}, s{S_T0}, {rt * 16384 + k4 * 64}")
            a.e(f"buffer_load_dwordx4 v{VX}, {S(SRD_X)}, s{S_T3} offen lds")


def stream_gemm_x(a, tag, seg0, segstep, nseg_total, jobs, epilogue, pre=None, nxbuf=4, flag=None):
    VX, VL = 1, 2
    SSEG, SNXT, SPAR = 46, 47, 48
    a.e(f"v_and_b32 v{VX}, 15, v0")
    a.e(f"v_lshlrev_b32 v{VX}, 10, v{VX}")
    a.e(f"v_lshrrev_b32 v3, 4, v0")
    a.e(f"v_lshl_add_u32 v{VX}, v3, 4, v{VX}")
    a.e(f"v_lshlrev_b32 v{VL}, 4, v0")
    a.e(f"s_mov_b32 s{SSEG}, s{seg0}")
    a.e(f"s_cmp_ge_u32 s{SSEG}, 64")
    a.e(f"s_cbranch_scc1 {tag}_DONE")
    x_dma(a, SSEG, 0, VX)
    a.e(f"s_mov_b32 s{SPAR}, {WS_F + 0xF000}")
    for par in range(2):
        a.label(f"{tag}_L{par}")
        buf = par * 32768
        a.e("s_waitcnt vmcnt(0)")
        a.e("s_barrier")
        if flag:
            set_flag(a, SPAR)
        a.e(f"s_add_u32 s{SNXT}, s{SSEG}, {segstep}")
        a.e(f"s_cmp_ge_u32 s{SNXT}, 64")
        a.e(f"s_cbranch_scc1 {tag}_NOPF{par}")
        x_dma(a, SNXT, 32768 - buf, VX)
        a.label(f"{tag}_NOPF{par}")
        if pre:
            pre(a, SSEG, par)
        seq = [(rt, ks) for rt in range(2) for ks in range(16)]
        for i in range(nxbuf - 1):
            rt, ks = seq[i]
            a.e(f"ds_read_b128 {vr(4 + 4 * (i % nxbuf), 4)}, v{VL} offset:{buf + rt * 16384 + ks * 1024}")
        for i, (rt, ks) in enumerate(seq):
            j = i + nxbuf - 1
            if j < len(seq):
                rt2, ks2 = seq[j]
                a.e(f"ds_read_b128 {vr(4 + 4 * (j % nxbuf), 4)}, v{VL} offset:{buf + rt2 * 16384 + ks2 * 1024}")
            a.e(f"s_waitcnt lgkmcnt({min(nxbuf - 1, len(seq) - 1 - i)})")
            xf = vr(4 + 4 * (i % nxbuf), 4)
            for home, transposed, accb in jobs:
                for t in range(2):
                    acc = vr(accb + (rt * 2 + t) * 4, 4)
                    wf = wfrag(home, ks >> 1, t, ks & 1)
                    c = "0" if ks == 0 else acc
                    if transposed:
                        a.e(f"v_mfma_f32_16x16x32_bf16 {acc}, {wf}, {xf}, {c}")
                    else:
                        a.e(f"v_mfma_f32_16x16x32_bf16 {acc}, {xf}, {wf}, {c}")
        epilogue(a, SSEG, par)
        if flag:
            flag(a, SSEG, SPAR)
        a.e(f"s_mov_b32 s{SSEG}, s{SNXT}")
        a.e(f"s_cmp_ge_u32 s{SSEG}, 64")
        a.e(f"s_cbranch_scc1 {tag}_LAST")
        if par == 1:
            a.e(f"s_branch {tag}_L0")
    a.label(f"{tag}_LAST")
    a.e("s_waitcnt vmcnt(0)")
    a.e("s_barrier")
    if flag:
        set_flag(a, SPAR)
    a.label(f"{tag}_DONE")


def pack4(a, dst, s0, s1):
    a.e(f"v_cvt_pk_bf16_f32 v{dst}, v{s0}, v{s0 + 1}")
    a.e(f"v_cvt_pk_bf16_f32 v{dst + 1}, v{s0 + 2}, v{s0 + 3}")
    a.e(f"v_cvt_pk_bf16_f32 v{dst + 2}, v{s1}, v{s1 + 1}")
    a.e(f"v_cvt_pk_bf16_f32 v{dst + 3}, v{s1 + 2}, v{s1 + 3}")


def flag_at(base, sidx):
    def f(a, sseg, sdst):
        a.e(f"s_lshl_b32 s{sdst}, s{sseg}, 5")
        a.e(f"s_add_u32 s{sdst}, s{sdst}, s{sidx}")
        a.e(f"s_lshl_b32 s{sdst}, s{sdst}, 2")
        a.e(f"s_add_u32 s{sdst}, s{sdst}, {base}")
    return f


def qkv_ids(a):
    a.e(f"s_sub_u32 s{S_T0}, s{S_XC}, 1")
    a.e(f"s_lshl_b32 s{S_T0}, s{S_T0}, 3")
    a.e(f"s_and_b32 s{S_T1}, s{S_Y}, 7")
    a.e(f"s_add_u32 s{S_H}, s{S_T0}, s{S_T1}")
    a.e(f"s_lshr_b32 s45, s{S_Y}, 3")


def role_kv(a, tag):
    qkv_ids(a)
    srd(a, SRD_B, P_WK, 0x400000)
    srd(a, SRD_C, P_WV, 0x400000)
    srd(a, SRD_X, P_X, 0x200000)
    a.e(f"s_lshl_b32 s49, s{S_H}, 8")
    loader_a(a, [(SRD_B, 49, 8192, WK), (SRD_C, 49, 8192, WV)])
    ACK, ACV = 32, 48

    def epi(a, sseg, par):
        a.e(f"s_lshl_b32 s{S_T0}, s{sseg}, 5")
        a.e(f"s_add_u32 s{S_T0}, s{S_T0}, s{S_H}")
        a.e(f"s_lshl_b32 s{S_T0}, s{S_T0}, 14")
        a.e(f"s_lshl_b32 s{S_T1}, s{S_W}, 10")
        a.e(f"s_add_u32 s{S_T2}, s{S_T0}, s{S_T1}")
        a.e(f"s_add_u32 s{S_T3}, s{S_T2}, s{S_T1}")
        a.e(f"s_add_u32 s{S_T3}, s{S_T3}, 8192")
        for kt in range(2):
            pack4(a, 64 + kt * 4, ACK + kt * 8, ACK + kt * 8 + 4)
        for t in range(2):
            pack4(a, 72 + t * 4, ACV + t * 4, ACV + 8 + t * 4)
        a.e(f"buffer_store_dwordx4 v[64:67], v2, {S(SRD_WS)}, s{S_T2} offen sc1")
        a.e(f"s_add_u32 s{S_T2}, s{S_T2}, 4096")
        a.e(f"buffer_store_dwordx4 v[68:71], v2, {S(SRD_WS)}, s{S_T2} offen sc1")
        a.e(f"buffer_store_dwordx4 v[72:75], v2, {S(SRD_WS)}, s{S_T3} offen sc1")
        a.e(f"buffer_store_dwordx4 v[76:79], v2, {S(SRD_WS)}, s{S_T3} offen offset:1024 sc1")

    wait_init(a, endof(tag))
    stream_gemm_x(a, tag, 45, 4, 64, [(WK, True, ACK), (WV, False, ACV)], epi, flag=flag_at(F_KV, S_H))


def role_attn(a, tag, load_wq=True):
    qkv_ids(a)
    srd(a, SRD_A, P_WQ, 0x400000)
    srd(a, SRD_X, P_X, 0x200000)
    a.e(f"s_lshl_b32 s49, s{S_H}, 8")
    if load_wq:
        loader_a(a, [(SRD_A, 49, 8192, WQ)])
    ACQ = 20
    KXF = 36
    KMF = 68
    VXF = 84
    VMF = 100
    QF = 104
    ONES = 120
    T = 124
    XQ = 65536
    MB = (58, 60, 62, 92)
    a.e(f"v_lshrrev_b32 v{T}, 4, v0")
    a.e(f"v_lshlrev_b32 v{T}, 2, v{T}")
    a.e(f"v_and_b32 v{T + 1}, 15, v0")
    a.e(f"s_and_b32 s{S_T0}, s{S_W}, 1")
    a.e(f"s_lshl_b32 s{S_T1}, s{S_T0}, 4")
    a.e(f"v_add_u32 v{T + 1}, s{S_T1}, v{T + 1}")
    for r in range(4):
        a.e(f"v_add_u32 v{T + 2}, {r}, v{T}")
        a.e(f"v_cmp_le_u32 s[{50 + 2 * r}:{51 + 2 * r}], v{T + 2}, v{T + 1}")
        a.e(f"v_add_u32 v{T + 2}, {16 + r}, v{T}")
        a.e(f"v_cmp_le_u32 s[{MB[r]}:{MB[r] + 1}], v{T + 2}, v{T + 1}")
    a.e("s_mov_b32 s94, -1")
    a.e("s_mov_b32 s95, 0")
    a.e("s_mov_b32 s96, 0")
    a.e("s_mov_b32 s97, -1")
    for i in range(4):
        a.e(f"v_mov_b32 v{ONES + i}, 0x3f803f80")
    a.e(f"s_mov_b32 s98, {f32(SCALE * LOG2E)}")
    a.e(f"s_mov_b32 s99, {f32(-1e9 / SCALE)}")
    a.e(f"s_lshr_b32 s100, s{S_W}, 1")
    a.e(f"s_and_b32 s101, s{S_W}, 1")
    a.e("v_lshlrev_b32 v3, 3, v0")

    def pre(a, sseg, par):
        a.e(f"s_lshl_b32 s{S_T0}, s{sseg}, 5")
        a.e(f"s_add_u32 s{S_T0}, s{S_T0}, s{S_H}")
        a.e(f"s_lshl_b32 s{S_T1}, s{S_T0}, 14")
        for i in range(8):
            a.e(f"s_add_u32 s{S_T2}, s{S_T1}, {WS_KV + i * 1024}")
            a.e(f"buffer_load_dwordx4 {vr(KXF + 4 * i, 4)}, v2, {S(SRD_WS)}, s{S_T2} offen")
        a.e(f"s_lshl_b32 s{S_T2}, s100, 12")
        a.e(f"s_add_u32 s{S_T1}, s{S_T1}, s{S_T2}")
        for i in range(4):
            a.e(f"s_add_u32 s{S_T2}, s{S_T1}, {WS_KV + 8192 + i * 1024}")
            a.e(f"buffer_load_dwordx4 {vr(VXF + 4 * i, 4)}, v2, {S(SRD_WS)}, s{S_T2} offen")

    def km_loads(a, sseg):
        flag_at(F_KM, S_H)(a, sseg, S_T0)
        wait_flags(a, S_T0, 1, endof(tag), vt=(T + 2, T + 3))
        a.e(f"s_lshl_b32 s{S_T0}, s{sseg}, 5")
        a.e(f"s_add_u32 s{S_T0}, s{S_T0}, s{S_H}")
        a.e(f"s_lshl_b32 s{S_T1}, s{S_T0}, 13")
        a.e(f"s_add_u32 s{S_T1}, s{S_T1}, {WS_KM}")
        for i in range(4):
            a.e(f"buffer_load_dwordx4 {vr(KMF + 4 * i, 4)}, v2, {S(SRD_WS)}, s{S_T1} offen offset:{i * 1024}")
        a.e(f"s_lshl_b32 s{S_T2}, s100, 10")
        a.e(f"s_add_u32 s{S_T1}, s{S_T1}, s{S_T2}")
        a.e(f"s_add_u32 s{S_T1}, s{S_T1}, 4096")
        a.e("v_lshlrev_b32 v3, 3, v0")
        for i in range(2):
            a.e(f"buffer_load_dwordx2 {vr(VMF + 2 * i, 2)}, v3, {S(SRD_WS)}, s{S_T1} offen offset:{i * 512}")

    def epi(a, sseg, par):
        a.e(f"s_lshl_b32 s{S_T0}, s{S_W}, 10")
        a.e(f"v_add_u32 v{T}, s{S_T0}, v2")
        a.e(f"v_add_u32 v{T}, {XQ}, v{T}")
        for qt in range(2):
            pack4(a, 4 + qt * 4, ACQ + qt * 8, ACQ + qt * 8 + 4)
            a.e(f"ds_write_b128 v{T}, {vr(4 + qt * 4, 4)} offset:{qt * 4096}")
        a.e(f"s_lshl_b32 s{S_T0}, s101, 12")
        a.e(f"v_add_u32 v{T}, s{S_T0}, v2")
        a.e(f"v_add_u32 v{T}, {XQ}, v{T}")
        a.e("s_waitcnt lgkmcnt(0)")
        a.e("s_barrier")
        for es in range(4):
            a.e(f"ds_read_b128 {vr(QF + 4 * es, 4)}, v{T} offset:{es * 1024}")
        km_loads(a, sseg)
        a.e("s_waitcnt vmcnt(0) lgkmcnt(0)")
        SM, S0, S1 = 20, 24, 28
        for es in range(4):
            a.e(f"v_mfma_f32_16x16x32_bf16 {vr(SM, 4)}, {vr(KMF + 4 * es, 4)}, {vr(QF + 4 * es, 4)}, {'0' if es == 0 else vr(SM, 4)}")
            a.e(f"v_mfma_f32_16x16x32_bf16 {vr(S0, 4)}, {vr(KXF + 4 * es, 4)}, {vr(QF + 4 * es, 4)}, {'0' if es == 0 else vr(S0, 4)}")
            a.e(f"v_mfma_f32_16x16x32_bf16 {vr(S1, 4)}, {vr(KXF + 16 + 4 * es, 4)}, {vr(QF + 4 * es, 4)}, {'0' if es == 0 else vr(S1, 4)}")
        a.e(f"v_mov_b32 v{T + 1}, s99")
        for r in range(4):
            a.e(f"v_cndmask_b32 v{S0 + r}, v{T + 1}, v{S0 + r}, s[{50 + 2 * r}:{51 + 2 * r}]")
            a.e(f"v_cndmask_b32 v{S1 + r}, v{T + 1}, v{S1 + r}, s[{MB[r]}:{MB[r] + 1}]")
        M = T
        a.e(f"v_max3_f32 v{M}, v{SM}, v{SM + 1}, v{SM + 2}")
        for i in range(3, 11, 2):
            a.e(f"v_max3_f32 v{M}, v{M}, v{SM + i}, v{SM + i + 1}")
        a.e(f"v_max_f32 v{M}, v{M}, v{SM + 11}")
        for sw in ("v_permlane16_swap_b32", "v_permlane32_swap_b32"):
            a.e(f"v_mov_b32 v{M + 1}, v{M}")
            a.e(f"{sw} v{M}, v{M + 1}")
            a.e(f"v_max_f32 v{M}, v{M}, v{M + 1}")
        a.e(f"v_mul_f32 v{M}, s98, v{M}")
        for i in range(12):
            a.e(f"v_fma_f32 v{SM + i}, v{SM + i}, s98, -v{M}")
            a.e(f"v_exp_f32 v{SM + i}, v{SM + i}")
        PX, PL, PH = 4, 8, 10
        pack4(a, PX, S0, S1)
        a.e(f"v_cvt_pk_bf16_f32 v{T}, v{SM}, v{SM + 1}")
        a.e(f"v_cvt_pk_bf16_f32 v{T + 1}, v{SM + 2}, v{SM + 3}")
        for i in range(2):
            a.e(f"v_cndmask_b32 v{PL + i}, 0, v{T + i}, s[94:95]")
            a.e(f"v_cndmask_b32 v{PH + i}, 0, v{T + i}, s[96:97]")
        ACO, L = 36, 32
        a.e(f"v_mfma_f32_16x16x32_bf16 {vr(L, 4)}, {vr(ONES, 4)}, {vr(PX, 4)}, 0")
        for i in range(4):
            a.e(f"v_mfma_f32_16x16x32_bf16 {vr(ACO + 4 * i, 4)}, {vr(VXF + 4 * i, 4)}, {vr(PX, 4)}, 0")
        a.e(f"v_mfma_f32_16x16x16_bf16 {vr(L, 4)}, {vr(ONES, 2)}, {vr(PL, 2)}, {vr(L, 4)}")
        for i in range(4):
            a.e(f"v_mfma_f32_16x16x16_bf16 {vr(ACO + 4 * i, 4)}, {vr(VMF + 2 * (i >> 1), 2)}, {vr(PH if i & 1 else PL, 2)}, {vr(ACO + 4 * i, 4)}")
        a.e(f"v_rcp_f32 v{T}, v{L}")
        for i in range(16):
            a.e(f"v_mul_f32 v{ACO + i}, v{ACO + i}, v{T}")
        a.e(f"s_lshl_b32 s{S_T0}, s{sseg}, 1")
        a.e(f"s_add_u32 s{S_T0}, s{S_T0}, s101")
        a.e(f"s_lshl_b32 s{S_T0}, s{S_T0}, 5")
        a.e(f"s_add_u32 s{S_T0}, s{S_T0}, s{S_H}")
        a.e(f"s_lshl_b32 s{S_T0}, s{S_T0}, 12")
        a.e(f"s_lshl_b32 s{S_T1}, s100, 11")
        a.e(f"s_add_u32 s{S_T0}, s{S_T0}, s{S_T1}")
        a.e(f"s_add_u32 s{S_T0}, s{S_T0}, {WS_OX}")
        for i in range(2):
            pack4(a, 12 + 4 * i - (0 if i == 0 else 0), ACO + 8 * i, ACO + 8 * i + 4)
            a.e(f"buffer_store_dwordx4 {vr(12 + 4 * i, 4)}, v2, {S(SRD_WS)}, s{S_T0} offen offset:{i * 1024} sc1")

    stream_gemm_x(a, tag, 45, 4, 64, [(WQ, True, ACQ)], epi, pre=pre, flag=flag_at(F_O, S_H))


def out_ids(a):
    a.e(f"s_sub_u32 s{S_T0}, s{S_XC}, 5")
    a.e(f"s_lshl_b32 s{S_T0}, s{S_T0}, 5")
    a.e(f"s_add_u32 s45, s{S_T0}, s{S_Y}")


def role_up(a, tag):
    out_ids(a)
    srd(a, SRD_A, P_W1, 512 * 1792 * 2)
    srd(a, SRD_X, P_X, 0x200000)
    a.e("s_cmp_ge_u32 s45, 91")
    a.e(f"s_cbranch_scc1 {tag}_GATE")
    a.e(f"s_mul_i32 s{S_T0}, s45, 147")
    a.e(f"s_lshr_b32 s50, s{S_T0}, 10")
    a.e(f"s_mul_i32 s{S_T0}, s50, 7")
    a.e(f"s_sub_u32 s51, s45, s{S_T0}")
    a.e("s_lshl_b32 s49, s51, 9")
    a.e("s_add_u32 s52, s49, 256")
    loader_a(a, [(SRD_A, 49, 3584, WK), (SRD_A, 52, 3584, WV)])
    AC0, AC1 = 32, 48
    a.e(f"s_mov_b32 s96, {f32(-LOG2E)}")

    def epi(a, sseg, par):
        a.e(f"s_mul_i32 s{S_T0}, s{sseg}, {2 * 56 * 1024}")
        a.e("s_lshl_b32 s37, s51, 3")
        a.e(f"s_add_u32 s{S_T1}, s{S_T1}, s{S_W}")
        a.e(f"s_lshl_b32 s{S_T1}, s{S_T1}, 10")
        a.e(f"s_add_u32 s{S_T0}, s{S_T0}, s{S_T1}")
        a.e(f"s_add_u32 s{S_T0}, s{S_T0}, {WS_HX}")
        for p, acb in enumerate((AC0, AC1)):
            for qt in range(2):
                b = acb + qt * 8
                pack4(a, 64, b, b + 4)
                for i in range(4):
                    a.e(f"v_lshlrev_b32 v{b + 2 * i}, 16, v{64 + i}")
                    a.e(f"v_and_b32 v{b + 2 * i + 1}, 0xffff0000, v{64 + i}")
                for i in range(8):
                    a.e(f"v_mul_f32 v{68 + i}, s96, v{b + i}")
                    a.e(f"v_exp_f32 v{68 + i}, v{68 + i}")
                for i in range(8):
                    a.e(f"v_add_f32 v{68 + i}, 1.0, v{68 + i}")
                    a.e(f"v_rcp_f32 v{68 + i}, v{68 + i}")
                for i in range(8):
                    a.e(f"v_mul_f32 v{b + i}, v{b + i}, v{68 + i}")
                d = 76 + 4 * ((p * 2 + qt) & 1)
                pack4(a, d, b, b + 4)
                a.e(f"s_add_u32 s{S_T1}, s{S_T0}, {qt * 56 * 1024 + p * 4096}")
                a.e(f"buffer_store_dwordx4 {vr(d, 4)}, v2, {S(SRD_WS)}, s{S_T1} offen sc1")

    wait_init(a, endof(tag))
    stream_gemm_x(a, tag, 50, 13, 64, [(WK, True, AC0), (WV, True, AC1)], epi, flag=flag_at(F_H, 51))
    a.e(f"s_branch {tag}_FIN")
    a.label(f"{tag}_GATE")
    srd(a, SRD_B, P_GW, 1024)
    a.e("s_sub_u32 s50, s45, 91")
    a.e("s_lshl_b32 s50, s50, 2")
    a.e(f"s_add_u32 s50, s50, s{S_W}")
    a.e("v_and_b32 v1, 15, v0")
    a.e("v_lshlrev_b32 v1, 4, v1")
    a.e("v_lshrrev_b32 v2, 4, v0")
    a.e("v_lshl_add_u32 v3, v2, 10, v1")
    for i in range(4):
        a.e(f"buffer_load_dwordx4 {vr(4 + 4 * i, 4)}, v1, {S(SRD_B)}, 0 offen offset:{256 * i}")
    a.e("v_mov_b32 v52, 0x3f803f80")
    a.e(f"s_mov_b32 s96, {f32(-LOG2E)}")
    a.e("s_waitcnt vmcnt(0)")
    for i in range(16):
        a.e(f"v_lshlrev_b32 v{20 + 2 * i}, 16, v{4 + i}")
        a.e(f"v_and_b32 v{21 + 2 * i}, 0xffff0000, v{4 + i}")
    a.e("v_and_b32 v53, 15, v0")
    a.e("v_cmp_eq_u32 s[54:55], 0, v53")
    a.label(f"{tag}_GL")
    a.e("s_lshl_b32 s51, s50, 12")
    for i in range(4):
        a.e(f"buffer_load_dwordx4 {vr(4 + 4 * i, 4)}, v3, {S(SRD_X)}, s51 offen offset:{256 * i}")
    a.e("v_mov_b32 v54, 0")
    a.e("s_waitcnt vmcnt(0)")
    for i in range(16):
        a.e(f"v_lshlrev_b32 v55, 16, v{4 + i}")
        a.e(f"v_and_b32 v56, 0xffff0000, v{4 + i}")
        a.e(f"v_mul_f32 v55, v55, v{20 + 2 * i}")
        a.e(f"v_mul_f32 v56, v56, v{21 + 2 * i}")
        a.e("v_cvt_pk_bf16_f32 v55, v55, v56")
        a.e("v_lshlrev_b32 v56, 16, v55")
        a.e("v_and_b32 v55, 0xffff0000, v55")
        a.e("v_add_f32 v54, v54, v56")
        a.e("v_add_f32 v54, v54, v55")
    for sh in (8, 4, 2, 1):
        a.e(f"v_add_f32_dpp v54, v54, v54 row_ror:{sh} row_mask:0xf bank_mask:0xf")
    a.e("v_cvt_pk_bf16_f32 v54, v54, v54")
    a.e("v_and_b32 v54, 0xffff0000, v54")
    a.e("v_mul_f32 v54, s96, v54")
    a.e("v_exp_f32 v54, v54")
    a.e("v_add_f32 v54, 1.0, v54")
    a.e("v_rcp_f32 v54, v54")
    a.e("v_cvt_pk_bf16_f32 v54, v54, v54")
    a.e("v_and_b32 v54, 0xffff0000, v54")
    a.e("s_lshl_b32 s51, s50, 4")
    a.e(f"s_add_u32 s51, s51, {WS_G}")
    a.e("v_lshlrev_b32 v55, 2, v2")
    a.e("s_mov_b64 exec, s[54:55]")
    a.e(f"buffer_store_dword v54, v55, {S(SRD_WS)}, s51 offen sc1")
    a.e("s_mov_b64 exec, -1")
    a.e("s_add_u32 s50, s50, 20")
    a.e("s_cmp_lt_u32 s50, 512")
    a.e(f"s_cbranch_scc1 {tag}_GL")
    wait_init(a, endof(tag))
    a.e("s_waitcnt vmcnt(0)")
    a.e("s_barrier")
    a.e("s_sub_u32 s50, s45, 91")
    a.e("s_lshl_b32 s50, s50, 2")
    a.e(f"s_add_u32 s50, s50, {F_G}")
    set_flag(a, 50)
    a.label(f"{tag}_FIN")


def loader_b(a, wsrd, sbase, nks, ntile, homes):
    rowb = 32 * ntile
    rpi = 1024 // rowb
    ksb = 32 * rowb
    ipk = ksb // 1024
    kpr = 32768 // ksb
    VD, TA, TMP, TMP2, G, R4, C4 = range(100, 107)
    lpr = rowb // 16
    sh = int(math.log2(lpr))
    swsh = 1 if ntile == 4 else 2
    a.c("---- loader B")
    a.e(f"v_lshrrev_b32 v{G}, {sh}, v0")
    a.e(f"v_bfe_u32 v{TMP}, v0, 1, {sh - 1}")
    a.e(f"v_bfe_u32 v{TMP2}, v{G}, {swsh}, {sh - 1}")
    a.e(f"v_xor_b32 v{TMP}, v{TMP}, v{TMP2}")
    a.e(f"v_lshlrev_b32 v{TMP}, 5, v{TMP}")
    a.e(f"v_and_b32 v{TMP2}, 1, v0")
    a.e(f"v_lshl_add_u32 v{TMP}, v{TMP2}, 4, v{TMP}")
    a.e(f"v_lshl_add_u32 v{VD}, v{G}, 10, v{TMP}")
    a.e(f"v_lshrrev_b32 v{G}, 4, v0")
    a.e(f"v_bfe_u32 v{R4}, v0, 2, 2")
    a.e(f"v_and_b32 v{C4}, 3, v0")
    a.e(f"v_lshl_add_u32 v{TMP}, v{G}, 2, v{R4}")
    a.e(f"v_bfe_u32 v{TMP2}, v{TMP}, {swsh}, {sh - 1}")
    a.e(f"v_lshlrev_b32 v{TMP2}, 5, v{TMP2}")
    a.e(f"v_lshl_add_u32 v{TMP2}, v{C4}, 3, v{TMP2}")
    a.e(f"s_mov_b32 s{S_T0}, {rowb}")
    a.e(f"v_mad_u32_u24 v{TA}, v{TMP}, s{S_T0}, v{TMP2}")
    a.e(f"s_mul_i32 s44, s{S_W}, 40960")
    a.e(f"v_add_u32 v{TA}, s44, v{TA}")
    ks = 0
    while ks < nks:
        n = min(kpr, nks - ks)
        for i in range(n * ipk):
            a.e(f"s_add_u32 s{S_T0}, s44, {i * 1024}")
            a.e(f"s_mov_b32 m0, s{S_T0}")
            a.e(f"s_add_u32 s{S_T1}, s{sbase}, {(ks * 32 + i * rpi) * 1024}")
            a.e(f"buffer_load_dwordx4 v{VD}, {S(wsrd)}, s{S_T1} offen lds")
        a.e("s_waitcnt vmcnt(0)")
        for T in range(ntile):
            a.e(f"v_xor_b32 v{TMP}, {T * 32}, v{TA}")
            for k in range(n):
                p, b = homes(ks + k, T)
                for u in range(2):
                    a.e(f"ds_read_b64_tr_b16 {vr(b + 2 * u, 2, p)}, v{TMP} offset:{k * ksb + u * 16 * rowb}")
                if k % 4 == 3:
                    a.e("s_waitcnt lgkmcnt(0)")
            a.e("s_waitcnt lgkmcnt(0)")
        ks += n
    a.e("s_barrier")


def role_ksplit(a, tag, kind):
    out_ids(a)
    down = kind == "down"
    nks, ntile = (14, 4) if down else (32, 2)
    nsl = 8 if down else 16
    nrep = 96 // nsl
    srd(a, SRD_A, P_W2 if down else P_WO, 1792 * 1024 if down else 0x400000)
    srd(a, SRD_E, P_OUT, 0x200000)
    a.e(f"s_and_b32 s51, s45, {nsl - 1}")
    a.e(f"s_lshr_b32 s50, s45, {int(math.log2(nsl))}")
    a.e(f"s_mul_i32 s49, s{S_W}, {nks * 32 * 1024}")
    a.e(f"s_mul_i32 s{S_T0}, s51, {ntile * 32}")
    a.e(f"s_add_u32 s49, s49, s{S_T0}")

    def homes(ks, T):
        i = (ks * ntile + T) * 4
        return ("a", i)
    loader_b(a, SRD_A, 49, nks, ntile, homes)
    ACC = 4
    AF = 40
    NB = 16
    a.e("v_lshlrev_b32 v2, 4, v0")
    a.e(f"s_lshl_b32 s{S_T0}, s{S_W}, 13")
    a.e(f"v_add_u32 v3, s{S_T0}, v2")
    a.e("v_and_b32 v1, 15, v0")
    a.e("v_lshrrev_b32 v36, 4, v0")
    a.e("v_lshlrev_b32 v37, 10, v1")
    a.e("v_lshl_add_u32 v37, v36, 3, v37")
    a.e("v_lshlrev_b32 v38, 2, v1")
    segblk = 2 * 56 * 1024 if down else 2 * 32 * 4096
    qtblk = segblk // 2
    base = WS_HX if down else WS_OX
    a.e(f"s_mul_i32 s52, s{S_W}, {nks * 1024}")
    a.e(f"s_add_u32 s52, s52, {base}")
    if down:
        a.e(f"s_mov_b32 s{S_T0}, {F_G}")
        wait_flags(a, S_T0, 5, endof(tag))
    a.label(f"{tag}_L")
    a.e(f"s_lshl_b32 s{S_T0}, s50, 7")
    if down:
        a.e(f"s_add_u32 s{S_T0}, s{S_T0}, {F_H}")
        wait_flags(a, S_T0, 7, endof(tag))
    else:
        a.e(f"s_lshl_b32 s{S_T1}, s{S_W}, 5")
        a.e(f"s_add_u32 s{S_T0}, s{S_T0}, s{S_T1}")
        a.e(f"s_add_u32 s{S_T0}, s{S_T0}, {F_O}")
        wait_flags(a, S_T0, 8, endof(tag))
    a.e(f"s_mul_i32 s53, s50, {segblk}")
    a.e("s_add_u32 s53, s53, s52")
    seq = [(qt, ks) for qt in range(2) for ks in range(nks)]

    def ld(i):
        qt, ks = seq[i]
        a.e(f"s_add_u32 s{S_T0}, s53, {qt * qtblk + ks * 1024}")
        a.e(f"buffer_load_dwordx4 {vr(AF + 4 * (i % NB), 4)}, v2, {S(SRD_WS)}, s{S_T0} offen")
    for i in range(NB - 1):
        ld(i)
    for i, (qt, ks) in enumerate(seq):
        if i + NB - 1 < len(seq):
            ld(i + NB - 1)
        a.e(f"s_waitcnt vmcnt({min(NB - 1, len(seq) - 1 - i)})")
        for T in range(ntile):
            acc = vr(ACC + (qt * ntile + T) * 4, 4)
            p, b = homes(ks, T)
            a.e(f"v_mfma_f32_16x16x32_bf16 {acc}, {vr(b, 4, p)}, {vr(AF + 4 * (i % NB), 4)}, {'0' if ks == 0 else acc}")
    nq = 2 * ntile
    a.e("s_barrier")
    for q in range(nq):
        a.e(f"ds_write_b128 v3, {vr(ACC + 4 * q, 4)} offset:{q * 1024}")
    a.e("s_waitcnt lgkmcnt(0)")
    a.e("s_barrier")
    per = nq // 4
    a.e(f"s_mul_i32 s{S_T0}, s{S_W}, {per * 1024}")
    a.e(f"v_add_u32 v39, s{S_T0}, v2")
    for j in range(per):
        for w2 in range(4):
            a.e(f"ds_read_b128 {vr(AF + (j * 4 + w2) * 4, 4)}, v39 offset:{w2 * 8192 + j * 1024}")
    if not down:
        a.e(f"s_lshl_b32 s{S_T0}, s50, 7")
        a.e(f"s_lshr_b32 s{S_T1}, s51, 1")
        a.e(f"s_lshl_b32 s{S_T1}, s{S_T1}, 2")
        a.e(f"s_add_u32 s{S_T0}, s{S_T0}, s{S_T1}")
        a.e(f"s_add_u32 s{S_T0}, s{S_T0}, {F_B}")
        wait_flags(a, S_T0, 1, endof(tag))
    a.e(f"s_lshr_b32 s{S_T0}, s{S_W}, 1")
    a.e(f"s_lshl_b32 s{S_T1}, s50, 1")
    a.e(f"s_add_u32 s{S_T0}, s{S_T0}, s{S_T1}")
    a.e(f"s_lshl_b32 s{S_T1}, s{S_T0}, 6")
    a.e(f"s_add_u32 s{S_T1}, s{S_T1}, {WS_G}")
    a.e(f"buffer_load_dword v104, v38, {S(SRD_WS)}, s{S_T1} offen")
    a.e(f"s_lshl_b32 s{S_T0}, s{S_T0}, 14")
    a.e(f"s_and_b32 s{S_T1}, s{S_W}, 1")
    a.e(f"s_mul_i32 s{S_T1}, s{S_T1}, {per * 32}")
    a.e(f"s_add_u32 s{S_T0}, s{S_T0}, s{S_T1}")
    a.e(f"s_mul_i32 s{S_T1}, s51, {ntile * 32}")
    a.e(f"s_add_u32 s{S_T0}, s{S_T0}, s{S_T1}")
    a.e(f"s_add_u32 s{S_T1}, s{S_T0}, {WS_BG}")
    if not down:
        a.e(f"buffer_load_dwordx2 v[106:107], v37, {S(SRD_WS)}, s{S_T1} offen")
    a.e("s_waitcnt lgkmcnt(0)")
    for j in range(per):
        b = AF + j * 16
        for r in range(4):
            a.e(f"v_add_f32 v{b + r}, v{b + r}, v{b + 4 + r}")
            a.e(f"v_add_f32 v{b + 8 + r}, v{b + 8 + r}, v{b + 12 + r}")
        for r in range(4):
            a.e(f"v_add_f32 v{b + r}, v{b + r}, v{b + 8 + r}")
        a.e(f"v_cvt_pk_bf16_f32 v{b + 4}, v{b}, v{b + 1}")
        a.e(f"v_cvt_pk_bf16_f32 v{b + 5}, v{b + 2}, v{b + 3}")
        for i in range(2):
            a.e(f"v_lshlrev_b32 v{b + 2 * i}, 16, v{b + 4 + i}")
            a.e(f"v_and_b32 v{b + 2 * i + 1}, 0xffff0000, v{b + 4 + i}")
    a.e("s_waitcnt vmcnt(0)")
    if down:
        a.e("v_sub_f32 v104, 1.0, v104")
        a.e("v_cvt_pk_bf16_f32 v104, v104, v104")
        a.e("v_and_b32 v104, 0xffff0000, v104")
    for j in range(per):
        b = AF + j * 16
        for r in range(4):
            a.e(f"v_mul_f32 v{b + r}, v{b + r}, v104")
        a.e(f"v_cvt_pk_bf16_f32 v{b + 4}, v{b}, v{b + 1}")
        a.e(f"v_cvt_pk_bf16_f32 v{b + 5}, v{b + 2}, v{b + 3}")
        if down:
            a.e(f"buffer_store_dwordx2 {vr(b + 4, 2)}, v37, {S(SRD_WS)}, s{S_T1} offen offset:{j * 32} sc1")
        else:
            for i in range(2):
                a.e(f"v_lshlrev_b32 v{b + 2 * i}, 16, v{b + 4 + i}")
                a.e(f"v_and_b32 v{b + 2 * i + 1}, 0xffff0000, v{b + 4 + i}")
                a.e(f"v_lshlrev_b32 v{b + 8 + 2 * i}, 16, v{106 + i}")
                a.e(f"v_and_b32 v{b + 8 + 2 * i + 1}, 0xffff0000, v{106 + i}")
            for r in range(4):
                a.e(f"v_add_f32 v{b + r}, v{b + r}, v{b + 8 + r}")
            a.e(f"v_cvt_pk_bf16_f32 v{b + 4}, v{b}, v{b + 1}")
            a.e(f"v_cvt_pk_bf16_f32 v{b + 5}, v{b + 2}, v{b + 3}")
            a.e(f"buffer_store_dwordx2 {vr(b + 4, 2)}, v37, {S(SRD_E)}, s{S_T0} offen")
    if down:
        a.e("s_waitcnt vmcnt(0)")
        a.e("s_barrier")
        flag_at(F_B, 51)(a, 50, S_T0)
        set_flag(a, S_T0)
    a.e(f"s_add_u32 s50, s50, {nrep}")
    a.e("s_cmp_lt_u32 s50, 64")
    a.e(f"s_cbranch_scc1 {tag}_L")
    a.e("s_waitcnt vmcnt(0) lgkmcnt(0)")
    a.e("s_barrier")


from chain import role_chain


def kernel(a, name, body):
    a.raw(f".globl {name}")
    a.raw(".p2align 8")
    a.raw(f".type {name},@function")
    a.label(name)
    tag = "K" + str(uid())
    common_prologue(a, tag)
    body(a, tag)
    a.label(f"{tag}_END")
    a.e("s_endpgm")


def dispatch(roles):
    def body(a, tag):
        for i, (lo, hi, fn) in enumerate(roles):
            a.e(f"s_cmp_lt_u32 s{S_XC}, {lo}")
            a.e(f"s_cbranch_scc1 {tag}_N{i}")
            a.e(f"s_cmp_gt_u32 s{S_XC}, {hi}")
            a.e(f"s_cbranch_scc1 {tag}_N{i}")
            fn(a, f"{tag}_R{i}")
            a.e(f"s_branch {tag}_END")
            a.label(f"{tag}_N{i}")
    return body


HEADER = open(os.path.join(os.path.dirname(__file__), "header.txt")).read()


def build(kernels):
    a = Asm()
    for name, body in kernels:
        kernel(a, name, body)
    txt = HEADER
    for name, _ in kernels:
        if os.environ.get("PLAIN") and len(kernels) == 1:
            txt += "; @launch grid=(256,1,1) block=(256,1,1) lds=163840\n"
        else:
            txt += f"; @launch kernel={name} grid=(256,1,1) block=(256,1,1) lds=163840\n"
    txt += '.amdgcn_target "amdgcn-amd-amdhsa--gfx950"\n.text\n'
    txt += a.render()
    txt += '.section .rodata,"a"\n'
    for name, _ in kernels:
        txt += f""".p2align 6
.amdhsa_kernel {name}
  .amdhsa_next_free_vgpr 512
  .amdhsa_next_free_sgpr 102
  .amdhsa_accum_offset 256
  .amdhsa_group_segment_fixed_size 0
  .amdhsa_float_denorm_mode_32 3
  .amdhsa_kernarg_size 112
  .amdhsa_user_sgpr_count 2
  .amdhsa_user_sgpr_kernarg_segment_ptr 1
  .amdhsa_system_sgpr_workgroup_id_x 1
.end_amdhsa_kernel
"""
    return txt


def seq(*fns):
    def body(a, tag):
        for i, fn in enumerate(fns):
            fn(a, f"{tag}{'abcdef'[i]}")
    return body


if __name__ == "__main__":
    kernels = [
        (NAME + "_kernel", dispatch([
            (0, 0, role_chain),
            (1, 4, seq(role_kv, role_attn)),
            (5, 7, seq(role_up, lambda a, t: role_ksplit(a, t, "down"), lambda a, t: role_ksplit(a, t, "oproj")))])),
    ]
    out = sys.argv[1] if len(sys.argv) > 1 else f"cdna_kernels/{NAME}.s"
    open(out, "w").write(build(kernels))
    print("wrote", out)
```
